```python
import torch

def _softmax(x, axis=-1):
    return torch.softmax(x, dim=axis)

def _gelu(x):
    return torch.nn.functional.gelu(x, approximate='tanh')

def _silu(x):
    return torch.nn.functional.silu(x)

def _sigmoid(x):
    return torch.sigmoid(x)

def _layernorm(x, axis=-1, eps=1e-05):
    m = x.mean(dim=axis, keepdim=True)
    v = x.var(dim=axis, keepdim=True, unbiased=False)
    return (x - m) / torch.sqrt(v + eps)

def _scatter_add(tgt, idx, src, axis=0):
    return tgt.clone().index_add_(axis, idx, src)

def _segment_sum(src, seg, n):
    out = torch.zeros((n,) + src.shape[1:], dtype=src.dtype)
    return out.index_add_(0, seg, src)

def _pad(x, pw):
    flat = tuple((v for pair in reversed(pw) for v in pair))
    return torch.nn.functional.pad(x, flat)
kernel_name = 'adaLN_cond__ssm_conv_h3__mixer_gmlp__prompt'

def setup_inputs():

    _w = lambda a: (lambda t: t.to(torch.bfloat16) if t.is_floating_point() else t)(torch.as_tensor(a))

    def _A_setup():
        B, S, D = (1, 2048, 512)
        ks = 4
        return {'q': _w((lambda *s: torch.randn(*s, dtype=torch.bfloat16) * 0.05)(B, S, D)), 'k': _w((lambda *s: torch.randn(*s, dtype=torch.bfloat16) * 0.8)(B, S, D)), 'v': _w((lambda *s: torch.randn(*s, dtype=torch.bfloat16) * 0.4)(B, S, D)), 'shift_k': _w((lambda *s: torch.randn(*s, dtype=torch.bfloat16) * 0.8)(D, ks) * 0.5), 'ssm_k': _w((lambda *s: torch.randn(*s, dtype=torch.bfloat16) * 0.8)(D, S) * (1.0 / S ** 0.5)), 'ssm_D': _w((lambda *s: torch.randn(*s, dtype=torch.bfloat16) * 0.4)(D))}
    _A_in = _A_setup()

    def _B_setup():
        B, S, D, F = (1, 2048, 512, 1792)
        Fh = F // 2
        return {'x': _w((lambda *s: torch.randn(*s, dtype=torch.bfloat16) * 0.05)(B, S, D)), 'w_in': _w((lambda *s: torch.randn(*s, dtype=torch.bfloat16) * 0.4)(D, 2 * Fh)), 'w_sp': _w(0.01 * (lambda *s: torch.randn(*s, dtype=torch.bfloat16) * 0.4)(S, S)), 'b_sp': _w(1.0 + 0.01 * (lambda *s: torch.randn(*s, dtype=torch.bfloat16) * 0.05)(S)), 'w_out': _w((lambda *s: torch.randn(*s, dtype=torch.bfloat16) * 0.05)(Fh, D))}
    _B_in = _B_setup()
    return {'A_q': _A_in['q'], 'A_k': _A_in['k'], 'A_v': _A_in['v'], 'A_shift_k': _A_in['shift_k'], 'A_ssm_k': _A_in['ssm_k'], 'A_ssm_D': _A_in['ssm_D'], 'B_x': _B_in['x'], 'B_w_in': _B_in['w_in'], 'B_w_sp': _B_in['w_sp'], 'B_b_sp': _B_in['b_sp'], 'B_w_out': _B_in['w_out'], 'c': _w((lambda *s: torch.randn(*s, dtype=torch.bfloat16) * 0.1)(1, 512) * 8.0), 'w_mod': _w((lambda *s: torch.randn(*s, dtype=torch.bfloat16) * 0.1)(512, 6 * 512) * 512 ** (-0.5) * 8.0)}

def reference(A_q, A_k, A_v, A_shift_k, A_ssm_k, A_ssm_D, B_x, B_w_in, B_w_sp, B_b_sp, B_w_out, c, w_mod):

    def _A_ref(q, k, v, shift_k, ssm_k, ssm_D):
        B, S, D = q.shape
        ks = shift_k.shape[-1]
        k_pad = _pad(k, ((0, 0), (ks - 1, 0), (0, 0)))
        k_shift = torch.zeros_like(k)
        for t in range(ks):
            k_shift = k_shift + k_pad[:, t:t + S, :] * shift_k[:, ks - 1 - t][None, None, :]
        kv = k_shift * v
        L = 2 * S
        kv_pad = _pad(kv, ((0, 0), (0, S), (0, 0)))
        kf_pad = _pad(ssm_k, ((0, 0), (0, S)))
        kv_f = (lambda x, axes=(-2, -1): torch.fft.rfft2(x.float(), dim=axes))(kv_pad[:, None, :, :], axes=(1, 2))
        kf_f = (lambda x, axes=(-2, -1): torch.fft.rfft2(x.float(), dim=axes))(kf_pad[:, None, :], axes=(1, 2))
        kf_f = (lambda x, *d: x.permute(*d))(kf_f, 1, 2, 0)
        y_f = kv_f * kf_f[None, :, :, :]
        y = (lambda x, s, axes=(-2, -1): torch.fft.irfft2(x, s=s, dim=axes).to(torch.bfloat16))(y_f, (1, L), axes=(1, 2))[:, 0, :S, :]
        y = y + kv * ssm_D[None, None, :]
        return q * y

    def _B_ref(x, w_in, w_sp, b_sp, w_out):
        B, S, D = x.shape
        F = w_in.shape[-1]
        Fh = F // 2
        z = _gelu(torch.einsum('bsd,df->bsf', x, w_in))
        z1 = z[..., :Fh].clone()
        z2 = _layernorm(z[..., Fh:], axis=-1)
        g = torch.einsum('ts,bsf->btf', w_sp, z2) + b_sp[None, :, None]
        return torch.einsum('bsf,fd->bsd', z1 * g, w_out)
    x = A_q
    mod = (_silu(c) @ w_mod).reshape(c.shape[0], 6, 1, -1)
    sa, ca, ga, sb, cb, gb = (mod[:, 0].clone(), mod[:, 1].clone(), mod[:, 2].clone(), mod[:, 3].clone(), mod[:, 4].clone(), mod[:, 5].clone())
    h = _layernorm(x, axis=-1) * (1 + ca) + sa
    x = x + ga * _A_ref(h, A_k, A_v, A_shift_k, A_ssm_k, A_ssm_D)
    h = _layernorm(x, axis=-1) * (1 + cb) + sb
    x = x + gb * _B_ref(h, B_w_in, B_w_sp, B_b_sp, B_w_out)
    return x
```

```python
import re

def vr(b, n=1):
    return f"v{b}" if n == 1 else f"v[{b}:{b+n-1}]"
def ar(b, n=1):
    return f"a{b}" if n == 1 else f"a[{b}:{b+n-1}]"
def sr(b, n=1):
    return f"s{b}" if n == 1 else f"s[{b}:{b+n-1}]"

class Alloc:
    def __init__(self, start, limit, kind):
        self.n = start; self.limit = limit; self.kind = kind; self.hi = start
    def __call__(self, n=1, align=None):
        if align is None:
            align = 1 if n == 1 else (2 if self.kind == 'v' else (2 if n == 2 else 4))
        b = (self.n + align - 1) // align * align
        self.n = b + n
        assert self.n <= self.limit, f"out of {self.kind} regs"
        self.hi = max(self.hi, self.n)
        return b
    def mark(self): return self.n
    def reset(self, m): self.n = m

_reg_re = re.compile(r'\b([vas])(\d+)\b|\b([vas])\[(\d+):(\d+)\]|\b(vcc|exec|m0|scc|vcc_lo|vcc_hi|exec_lo|exec_hi)\b')

def regs_of(op):
    out = set()
    for m in _reg_re.finditer(op):
        if m.group(1):
            out.add((m.group(1), int(m.group(2))))
        elif m.group(3):
            for i in range(int(m.group(4)), int(m.group(5)) + 1):
                out.add((m.group(3), i))
        else:
            g = m.group(6)
            if g.startswith('vcc'): out.add(('vcc', 0))
            elif g.startswith('exec'): out.add(('exec', 0))
            else: out.add((g, 0))
    return out

TRANS = ('v_exp_f32', 'v_log_f32', 'v_rcp_f32', 'v_rsq_f32', 'v_sqrt_f32', 'v_sin_f32', 'v_cos_f32', 'v_rcp_iflag_f32')

class Ins:
    __slots__ = ('text', 'mn', 'ops', 'kind', 'wr', 'rd', 'passes', 'srcA', 'srcB', 'srcC', 'dpp', 'states',
                 'trans', 'wide_store', 'ldsdma', 'sdwa_dst', 'data')
    def __init__(self, text):
        self.text = text
        t = text.split(';')[0].strip()
        parts = t.split(None, 1)
        self.mn = mn = parts[0]
        rest = parts[1] if len(parts) > 1 else ''
        ops = [o.strip() for o in re.split(r',(?![^\[]*\])', rest)] if rest else []
        self.ops = ops
        self.wr = set(); self.rd = set(); self.passes = 0
        self.srcA = self.srcB = self.srcC = set()
        self.dpp = ('_dpp' in mn) or any(k in rest for k in ('row_shr', 'row_shl', 'row_ror', 'quad_perm', 'row_bcast', 'row_mirror', 'row_half_mirror', 'wave_sh', 'wave_ro', 'row_newbcast'))
        self.states = 1; self.trans = False; self.wide_store = False; self.ldsdma = False; self.sdwa_dst = False
        self.data = set()
        base = re.sub(r'_(e32|e64|dpp|sdwa)$', '', mn)
        if mn.startswith('v_mfma'):
            self.kind = 'mfma'
            self.passes = 8 if '32x32x16' in mn else (4 if '16x16x32' in mn else None)
            assert self.passes, mn
            self.wr = regs_of(ops[0]); self.srcA = regs_of(ops[1]); self.srcB = regs_of(ops[2]); self.srcC = regs_of(ops[3].split()[0])
            self.rd = self.srcA | self.srcB | self.srcC
        elif mn.startswith('v_'):
            self.kind = 'valu'
            self.trans = base in TRANS
            nd = 1
            if base in ('v_add_co_u32', 'v_sub_co_u32', 'v_addc_co_u32', 'v_subb_co_u32', 'v_subrev_co_u32', 'v_mad_u64_u32', 'v_div_scale_f32'):
                nd = 2
            for o in ops[:nd]: self.wr |= regs_of(o)
            for o in ops[nd:]: self.rd |= regs_of(o)
            if base.startswith('v_permlane') and 'swap' in base:
                self.wr |= regs_of(ops[1]); self.rd |= regs_of(ops[0])
            if base in ('v_fmac_f32', 'v_dot2c_f32_bf16', 'v_pk_fmac_f16', 'v_writelane_b32') or self.dpp or 'UNUSED_PRESERVE' in rest:
                self.rd |= regs_of(ops[0])
            if base.startswith('v_cmpx'): self.wr.add(('exec', 0))
            if base == 'v_cndmask_b32' and len(ops) == 3: self.rd.add(('vcc', 0))
            m = re.search(r'dst_sel:(\w+)', rest)
            if m and m.group(1) != 'DWORD': self.sdwa_dst = True
            if 'op_sel:' in rest and not base.startswith('v_pk_') and not base.startswith('v_dot2'): self.sdwa_dst = True
        elif mn.startswith('buffer_') or mn.startswith('global_'):
            self.kind = 'vmem'
            lds = bool(re.search(r'\blds\b', rest)) or 'load_lds' in mn
            self.ldsdma = lds
            if mn in ('buffer_wbl2', 'buffer_inv'):
                pass
            elif 'load' in mn and not lds:
                self.wr = regs_of(ops[0])
                for o in ops[1:]: self.rd |= regs_of(o)
            elif 'atomic' in mn and re.search(r'\bsc0\b', rest):
                self.wr = regs_of(ops[0])
                for o in ops: self.rd |= regs_of(o)
            else:
                for o in ops: self.rd |= regs_of(o)
                if 'store' in mn and ('x4' in mn or 'x3' in mn):
                    self.wide_store = True
                    self.data = regs_of(ops[0]) if mn.startswith('buffer_') else regs_of(ops[1])
            if lds: self.rd.add(('m0', 0))
        elif mn.startswith('ds_'):
            self.kind = 'ds'
            if 'read' in mn or 'bpermute' in mn or 'permute' in mn or 'swizzle' in mn or '_rtn' in mn:
                self.wr = regs_of(ops[0])
                for o in ops[1:]: self.rd |= regs_of(o)
            else:
                for o in ops: self.rd |= regs_of(o)
        elif mn.startswith('s_'):
            self.kind = 'salu'
            if mn == 's_nop':
                self.states = int(ops[0], 0) + 1
            elif mn.startswith('s_cmp') or mn.startswith('s_cbranch') or mn in ('s_branch', 's_waitcnt', 's_barrier', 's_endpgm', 's_sleep', 's_setprio'):
                for o in ops: self.rd |= regs_of(o) if not mn.startswith('s_cbranch') and mn != 's_branch' and mn != 's_waitcnt' else set()
            else:
                if ops: self.wr = regs_of(ops[0])
                for o in ops[1:]: self.rd |= regs_of(o)
                if 'saveexec' in mn: self.wr.add(('exec', 0))
        else:
            raise ValueError("unknown instr: " + text)

def vg(s): return {r for r in s if r[0] in 'va' and r[0] != 'vcc'}
def sg(s): return {r for r in s if r[0] == 's' or r[0] == 'vcc'}

def need(p, c):
    n = 0
    if p.kind == 'valu':
        wv = {r for r in p.wr if r[0] in ('v', 'a')}
        ws = sg(p.wr)
        if c.kind == 'mfma' and wv & c.rd: n = max(n, 2)
        if c.kind == 'valu':
            if c.dpp and wv & c.rd: n = max(n, 2)
            if c.mn.startswith('v_permlane') and wv & c.rd: n = max(n, 2)
            if (c.mn.startswith('v_readlane') or c.mn.startswith('v_readfirstlane')) and wv & c.rd: n = max(n, 1)
            if ws & c.rd:
                n = max(n, 4 if c.mn.startswith(('v_readlane', 'v_writelane')) else 2)
            if p.trans and not c.trans and wv & c.rd: n = max(n, 1)
            if p.trans and c.trans and wv & c.rd: n = max(n, 1)
            if p.sdwa_dst and wv & (c.rd | c.wr): n = max(n, 1)
        if c.kind == 'vmem' and ws & c.rd: n = max(n, 5)
        if c.kind == 'salu' and ws & c.rd: n = max(n, 1)
        if ('exec', 0) in p.wr:
            if c.kind == 'mfma': n = max(n, 4)
            if c.kind == 'valu': n = max(n, 5)
    elif p.kind == 'mfma':
        P = p.passes
        if c.kind == 'mfma':
            if p.wr & c.srcC:
                if not (p.wr == c.srcC and p.passes == c.passes): n = max(n, {4: 6, 8: 10}[P])
            if p.wr & (c.srcA | c.srcB): n = max(n, {4: 8, 8: 12}[P])
        elif c.kind in ('valu', 'vmem', 'ds'):
            if p.wr & (c.rd | c.wr): n = max(n, {4: 8, 8: 12}[P])
            if c.kind == 'valu' and p.srcC & c.wr: n = max(n, {4: 3, 8: 7}[P])
    elif p.kind == 'vmem':
        if p.wide_store and p.data & c.wr:
            n = max(n, 2 if c.kind in ('valu', 'mfma') else 1)
    elif p.kind == 'salu':
        if ('m0', 0) in p.wr and c.kind == 'vmem' and c.ldsdma: n = max(n, 1)
    return n

MAXW = 12

class Prog:
    def __init__(self):
        self.items = []
        self.uid = 0
    def __call__(self, text):
        for line in text.split('\n'):
            s = line.strip()
            if not s: continue
            if s.startswith(';') or s.startswith('.'):
                self.items.append(('t', s))
            elif s.endswith(':'):
                self.items.append(('l', s[:-1]))
            else:
                self.items.append(('i', Ins(s)))
    def label(self, name): self.items.append(('l', name))
    def newlabel(self, base='L'):
        self.uid += 1
        return f"{base}_{self.uid}"
    def raw(self, text): self.items.append(('t', text))

    def _deficit(self, window, c):
        dist = 0; worst = 0
        for p in reversed(window):
            n = need(p, c)
            if n > dist: worst = max(worst, n - dist)
            dist += p.states
            if dist >= MAXW: break
        return worst

    def fix_hazards(self):
        out = []; win = []
        for it in self.items:
            if it[0] == 'i':
                c = it[1]
                d = self._deficit(win, c)
                while d > 0:
                    k = min(d, 16)
                    nop = Ins(f"s_nop {k-1}")
                    out.append(('i', nop)); win.append(nop); d -= k
                out.append(it); win.append(c)
                if c.mn in ('s_branch', 's_endpgm'): win = []
                win = win[-MAXW:]
            else:
                out.append(it)
        self.items = out
        changed = True
        while changed:
            changed = False
            labels = {it[1]: k for k, it in enumerate(self.items) if it[0] == 'l'}
            for k, it in enumerate(self.items):
                if it[0] != 'i' or not (it[1].mn.startswith('s_cbranch') or it[1].mn == 's_branch'): continue
                tgt = it[1].ops[0]
                if tgt not in labels: continue
                win = [x[1] for x in self.items[max(0, k - 40):k + 1] if x[0] == 'i'][-MAXW:]
                j = labels[tgt]; cnt = 0; worst = 0
                w2 = list(win)
                while j < len(self.items) and cnt < MAXW:
                    x = self.items[j]; j += 1
                    if x[0] != 'i': continue
                    d = self._deficit(w2, x[1])
                    worst = max(worst, d)
                    w2.append(x[1]); cnt += x[1].states
                    if x[1].mn in ('s_branch', 's_endpgm'): break
                if worst > 0:
                    self.items.insert(k, ('i', Ins(f"s_nop {worst-1}")))
                    changed = True
                    break

    def text(self):
        lines = []
        for it in self.items:
            if it[0] == 'i': lines.append('    ' + it[1].text)
            elif it[0] == 'l': lines.append(it[1] + ':')
            else: lines.append(it[1])
        return '\n'.join(lines) + '\n'

def kernel_header(name):
    return f".text\n.globl {name}\n.p2align 8\n.type {name},@function\n{name}:\n"

def kernel_desc(name, vgprs, sgprs=96, agprs=0):
    acc = (vgprs + 3) // 4 * 4
    total = acc + agprs if agprs else vgprs
    return f""".section .rodata,"a"
.p2align 6
.amdhsa_kernel {name}
  .amdhsa_next_free_vgpr {total}
  .amdhsa_next_free_sgpr {sgprs}
  .amdhsa_accum_offset {acc}
  .amdhsa_group_segment_fixed_size 0
  .amdhsa_kernarg_size 128
  .amdhsa_user_sgpr_count 2
  .amdhsa_user_sgpr_kernarg_segment_ptr 1
  .amdhsa_system_sgpr_workgroup_id_x 1
.end_amdhsa_kernel
"""
```

```python
EPOCH = 0
F1   = 4096
FM   = F1 + 256 * 128
C2   = 65536
F4   = C2 + 4096
F5   = F4 + 256 * 128
ST1  = 1 << 18
MOD  = ST1 + 16384
ST3  = 1 << 19
PROF = 3 << 18
KVR  = 1 << 20
XT   = 3 << 20
X1T  = 5 << 20
WIN  = 7 << 20
Z2N  = 9 << 20
U    = 13 << 20
WS_SIZE = 17 << 20
OOB = 0x40000000
```

```python
import sys
from asm import *
import layout as L

NAME = "adaLN_cond__ssm_conv_h3__mixer_gmlp__prompt_kernel"
P_Q, P_K, P_V, P_SH, P_SSM, P_D, P_BX, P_WIN, P_WSP, P_BSP, P_WOUT, P_C, P_WMOD, P_OUT, P_DBG, P_WS = range(16)
def ptr(p): return 4 + 2 * p
WS = 36
SA, SB, SC, SD = 40, 44, 48, 52
sWAVE, sE, sI, sJ = 56, 57, 58, 59
sT = list(range(60, 80))
sSTAMP = 80
sX = 84
s4096, s8192 = 86, 87
SPIN_LIMIT = 200000

PV_CB = 226
PV_AUG = 242
PV_XRES = 246
VLIM = 226
KC_STRIDE = 4384
KC = 0
KVL = 2 * 8 * KC_STRIDE
KVL_STRIDE = 6400
L_WST = 83968
L_SILU = L_WST + 8192
L_MODP = L_SILU + 2048
XA_FR = 1056
L_XA = 0
L_XRES = 64 * XA_FR
L_STP = 131072
L_ST2 = L_STP + 2048
L_ZP = L_ST2 + 2048
L_ST3 = L_ZP + 2048
L_AUG = 139264
L_Z1 = L_AUG + 2048
LDS_BYTES = L_Z1 + 16384

class G:
    def __init__(self, upto=4, prof=False, xmap='8x4'):
        self.p = Prog(); self.upto = upto; self.prof = prof; self.xmap = xmap
        self.nstamp = 0
        self.vhi = 0

    def srd(self, s, p_idx, size):
        p = self.p
        p(f"s_mov_b32 s{s}, s{ptr(p_idx)}"); p(f"s_mov_b32 s{s+1}, s{ptr(p_idx)+1}")
        p(f"s_mov_b32 s{s+2}, {size}"); p(f"s_mov_b32 s{s+3}, 0x20000")

    def stamp(self, vtmp):
        if not self.prof: return
        p = self.p; n = self.nstamp; self.nstamp += 1
        lab = p.newlabel("L_ns")
        p(f"s_cmp_eq_u32 s{sWAVE}, 0"); p(f"s_cbranch_scc0 {lab}")
        p(f"s_memrealtime s[{sSTAMP}:{sSTAMP+1}]"); p("s_waitcnt lgkmcnt(0)")
        p(f"v_writelane_b32 v255, s{sSTAMP}, {n}")
        p.label(lab)

    def flush_stamps(self):
        if not self.prof: return
        p = self.p
        lab = p.newlabel("L_fs")
        p(f"s_cmp_eq_u32 s{sWAVE}, 0"); p(f"s_cbranch_scc0 {lab}")
        p(f"s_lshl_b32 s{sT[0]}, s2, 8"); p(f"s_add_u32 s{sT[0]}, s{sT[0]}, {L.PROF}")
        p(f"v_lshlrev_b32 v254, 2, v1")
        p(f"buffer_store_dword v255, v254, s[{WS}:{WS+3}], s{sT[0]} offen")
        p.label(lab)

    def poll(self, vaddr, soff, nload, stride_imm_regs, vdst, target_s, tag, ge=False):
        p = self.p
        lp = p.newlabel("L_poll" + tag); done = p.newlabel("L_pd" + tag)
        p(f"s_mov_b32 s{sT[18]}, 0")
        p.label(lp)
        for k in range(nload):
            if k == 0: so = soff
            else:
                p(f"s_add_u32 s{sT[19]}, s{soff}, {k*stride_imm_regs}"); so = sT[19]
            p(f"buffer_load_dword v{vdst+k}, v{vaddr[k] if isinstance(vaddr, list) else vaddr}, s[{WS}:{WS+3}], s{so} offen sc1")
        p("s_waitcnt vmcnt(0)")
        for k in range(nload): p(f"v_xor_b32 v{vdst+k}, s{target_s}, v{vdst+k}")
        for k in range(1, nload): p(f"v_or_b32 v{vdst}, v{vdst}, v{vdst+k}")
        p(f"v_cmp_ne_u32 vcc, 0, v{vdst}")
        p(f"s_cbranch_vccz {done}")
        p(f"s_add_u32 s{sT[18]}, s{sT[18]}, 1"); p(f"s_cmp_gt_u32 s{sT[18]}, {SPIN_LIMIT}"); p(f"s_cbranch_scc1 {done}")
        p("s_sleep 1")
        p(f"s_branch {lp}")
        p.label(done)

    def allreduce(self, regs, tmp):
        p = self.p
        for mod in ("quad_perm:[1,0,3,2]", "quad_perm:[2,3,0,1]", "row_half_mirror", "row_mirror"):
            for r in regs: p(f"v_add_f32_dpp v{r}, v{r}, v{r} {mod} row_mask:0xf bank_mask:0xf")
        for sw in ("v_permlane16_swap_b32", "v_permlane32_swap_b32"):
            for r, t in zip(regs, tmp): p(f"v_mov_b32 v{t}, v{r}")
            for r, t in zip(regs, tmp): p(f"{sw} v{r}, v{t}")
            for r, t in zip(regs, tmp): p(f"v_add_f32 v{r}, v{r}, v{t}")

    def unpack(self, lo, hi, src):
        self.p(f"v_lshlrev_b32 v{lo}, 16, v{src}"); self.p(f"v_and_b32 v{hi}, 0xffff0000, v{src}")

    def prologue(self):
        p = self.p
        p("s_cmp_ge_u32 s2, 256"); p("s_cbranch_scc1 L_end")
        p("s_load_dwordx16 s[4:19], s[0:1], 0"); p("s_load_dwordx16 s[20:35], s[0:1], 64")
        p("v_and_b32 v1, 63, v0"); p("v_lshrrev_b32 v2, 6, v0"); p(f"v_readfirstlane_b32 s{sWAVE}, v2")
        if self.prof: p("v_mov_b32 v255, 0")
        t = sT
        p(f"s_and_b32 s{t[0]}, s2, 7"); p(f"s_lshr_b32 s{t[1]}, s2, 3")
        if self.xmap == '8x4':
            p(f"s_lshr_b32 s{t[2]}, s{t[0]}, 1"); p(f"s_lshl_b32 s{t[2]}, s{t[2]}, 3"); p(f"s_and_b32 s{t[3]}, s{t[1]}, 7"); p(f"s_add_u32 s{sI}, s{t[2]}, s{t[3]}")
            p(f"s_and_b32 s{t[2]}, s{t[0]}, 1"); p(f"s_lshl_b32 s{t[2]}, s{t[2]}, 2"); p(f"s_lshr_b32 s{t[3]}, s{t[1]}, 3"); p(f"s_add_u32 s{sJ}, s{t[2]}, s{t[3]}")
        else:
            p(f"s_lshl_b32 s{t[2]}, s{t[0]}, 2"); p(f"s_and_b32 s{t[3]}, s{t[1]}, 3"); p(f"s_add_u32 s{sI}, s{t[2]}, s{t[3]}")
            p(f"s_lshr_b32 s{sJ}, s{t[1]}, 2")
        p(f"s_mov_b32 s{s4096}, 4096"); p(f"s_mov_b32 s{s8192}, 8192")
        p("s_waitcnt lgkmcnt(0)")
        self.srd(WS, P_WS, L.WS_SIZE)
        p(f"s_load_dword s{sE}, s[{ptr(P_WS)}:{ptr(P_WS)+1}], {L.EPOCH}")
        self.stamp(2)

    def phase0(self):
        p = self.p; t = sT
        V = Alloc(2, 254, 'v')
        self.srd(SA, P_K, 2097152); self.srd(SB, P_V, 2097152); self.srd(SC, P_Q, 2097152); self.srd(SD, P_SH, 4096)
        vcp, vrg, vb, va, vtmp = V(), V(), V(), V(), V()
        p(f"v_and_b32 v{vcp}, 31, v0"); p(f"v_lshrrev_b32 v{vrg}, 5, v0")
        p(f"s_lshr_b32 s{t[0]}, s2, 3"); p(f"s_lshl_b32 s{t[0]}, s{t[0]}, 16")
        p(f"s_and_b32 s{t[1]}, s2, 7"); p(f"s_lshl_b32 s{t[2]}, s{t[1]}, 7"); p(f"s_add_u32 s{t[0]}, s{t[0]}, s{t[2]}")
        p(f"v_lshlrev_b32 v{vb}, 13, v{vrg}"); p(f"v_lshl_add_u32 v{vb}, v{vcp}, 2, v{vb}"); p(f"v_add_u32 v{vb}, s{t[0]}, v{vb}")
        p(f"v_subrev_u32 v{va}, 3072, v{vb}")
        p(f"v_cmp_gt_u32 vcc, 1024, v{vb}"); p(f"v_mov_b32 v{vtmp}, {L.OOB}"); p(f"v_cndmask_b32 v{va}, v{va}, v{vtmp}, vcc")
        rk = V(11); rv = V(8); rx = V(8); rsh = V(4, 2); rst = V(8, 2)
        def ld(dst, vaddr, srd, n):
            so = "0" if n < 4 else f"s{s4096}"
            p(f"buffer_load_dword v{dst}, v{vaddr}, s[{srd}:{srd+3}], {so} offen offset:{(n%4)*1024}")
        for n in range(3): ld(rk + n, va, SA, n)
        for n in range(8): ld(rk + 3 + n, vb, SA, n)
        for n in range(8): ld(rv + n, vb, SB, n)
        p(f"s_lshl_b32 s{t[2]}, s{t[1]}, 9"); p(f"v_lshlrev_b32 v{vtmp}, 4, v{vcp}")
        p(f"buffer_load_dwordx4 {vr(rsh,4)}, v{vtmp}, s[{SD}:{SD+3}], s{t[2]} offen")
        for n in range(8): ld(rx + n, vb, SC, n)
        vl16 = V(); self.vl16 = vl16
        p(f"v_lshlrev_b32 v{vl16}, 4, v1")
        p(f"s_lshl_b32 s{t[3]}, s2, 13"); p(f"s_lshl_b32 s{t[4]}, s{sWAVE}, 11"); p(f"s_add_u32 s{t[3]}, s{t[3]}, s{t[4]}")
        p(f"buffer_load_dwordx4 {vr(rst,4)}, v{vl16}, s[{SC}:{SC+3}], s{t[3]} offen")
        p(f"buffer_load_dwordx4 {vr(rst+4,4)}, v{vl16}, s[{SC}:{SC+3}], s{t[3]} offen offset:1024")
        self.srd(SD, P_WIN, 512 * 3584)
        vw = V()
        p(f"v_lshrrev_b32 v{vw}, 1, v1"); p(f"v_mul_u32_u24 v{vw}, 3584, v{vw}")
        p(f"v_and_b32 v{vtmp}, 1, v1"); p(f"v_lshl_add_u32 v{vw}, v{vtmp}, 4, v{vw}")
        p(f"s_and_b32 s{t[5]}, s2, 15"); p(f"s_lshr_b32 s{t[6]}, s2, 4")
        p(f"s_mul_i32 s{t[7]}, s{t[6]}, 7"); p(f"s_lshl_b32 s{t[8]}, s{sWAVE}, 1"); p(f"s_add_u32 s{t[7]}, s{t[7]}, s{t[8]}")
        p(f"s_mul_i32 s{t[9]}, s{t[5]}, {32*3584}"); p(f"s_lshl_b32 s{t[10]}, s{t[7]}, 5"); p(f"s_add_u32 s{t[9]}, s{t[9]}, s{t[10]}")
        p(f"s_add_u32 s{t[10]}, s{t[9]}, 32"); p(f"s_cmp_eq_u32 s{sWAVE}, 3"); p(f"s_cselect_b32 s{t[10]}, {L.OOB}, s{t[10]}")
        p(f"s_lshl_b32 s{t[11]}, s{sWAVE}, 11"); p(f"s_add_u32 s{t[11]}, s{t[11]}, {L_WST}")
        p(f"s_mov_b32 m0, s{t[11]}"); p(f"buffer_load_dwordx4 v{vw}, s[{SD}:{SD+3}], s{t[9]} offen lds")
        p(f"s_add_u32 m0, s{t[11]}, 1024"); p(f"buffer_load_dwordx4 v{vw}, s[{SD}:{SD+3}], s{t[10]} offen lds")
        self.srd(SD, P_SSM, 2097152)
        rl = V(40, 2); vs = V()
        p(f"v_subrev_u32 v{vs}, 1, v0"); p(f"v_max_i32 v{vs}, 0, v{vs}"); p(f"v_lshlrev_b32 v{vs}, 4, v{vs}")
        p(f"s_lshl_b32 s{t[12]}, s{t[1]}, 6"); p(f"s_lshr_b32 s{t[13]}, s2, 3"); p(f"s_lshl_b32 s{t[13]}, s{t[13]}, 1"); p(f"s_add_u32 s{t[12]}, s{t[12]}, s{t[13]}")
        sD0 = 88; self.sD0 = sD0
        p(f"s_mov_b32 s{sD0}, s{t[12]}")
        p(f"s_lshl_b32 s{t[12]}, s{t[12]}, 12"); p(f"s_add_u32 s{t[13]}, s{t[12]}, 4096")
        for ch in range(2):
            for q in range(5):
                p(f"buffer_load_dwordx4 {vr(rl+20*ch+4*q,4)}, v{vs}, s[{SD}:{SD+3}], s{t[12+ch]} offen offset:{4*q}")
        Kp = V(22, 2); Vp = V(16, 2); W = V(8, 2); acc = V(16, 2)
        p("s_waitcnt vmcnt(22)")
        for n in range(11): self.unpack(Kp + 2 * n, Kp + 2 * n + 1, rk + n)
        for n in range(8): self.unpack(Vp + 2 * n, Vp + 2 * n + 1, rv + n)
        self.unpack(W + 0, W + 2, rsh + 0); self.unpack(W + 4, W + 6, rsh + 1)
        self.unpack(W + 1, W + 3, rsh + 2); self.unpack(W + 5, W + 7, rsh + 3)
        for s in range(8):
            p(f"v_pk_mul_f32 {vr(acc+2*s,2)}, {vr(Kp+2*s,2)}, {vr(W+6,2)}")
        for j in (2, 1, 0):
            for s in range(8):
                p(f"v_pk_fma_f32 {vr(acc+2*s,2)}, {vr(Kp+2*(s+3-j),2)}, {vr(W+2*j,2)}, {vr(acc+2*s,2)}")
        for s in range(8):
            p(f"v_pk_mul_f32 {vr(acc+2*s,2)}, {vr(acc+2*s,2)}, {vr(Vp+2*s,2)}")
        o = V(16, 2)
        for ch in range(2):
            for q in range(4):
                p(f"v_cvt_pk_bf16_f32 v{o+4*ch+q}, v{acc+2*(7-2*q)+ch}, v{acc+2*(6-2*q)+ch}")
        vsk, vsx = V(), V()
        p(f"v_lshlrev_b32 v{vsx}, 13, v{vcp}")
        p(f"v_lshlrev_b32 v{vtmp}, 4, v{vrg}")
        p(f"v_sub_u32 v{vsk}, v{vsx}, v{vtmp}"); p(f"v_add_u32 v{vsk}, 112, v{vsk}")
        p(f"v_add_u32 v{vsx}, v{vsx}, v{vtmp}")
        p(f"s_lshl_b32 s{t[14]}, s{t[1]}, 18")
        p(f"s_lshr_b32 s{t[15]}, s2, 3"); p(f"s_lshl_b32 s{t[15]}, s{t[15]}, 7")
        p(f"s_add_u32 s{t[16]}, s{t[14]}, s{t[15]}"); p(f"s_add_u32 s{t[16]}, s{t[16]}, {L.XT}")
        p(f"s_sub_u32 s{t[14]}, s{t[14]}, s{t[15]}"); p(f"s_add_u32 s{t[14]}, s{t[14]}, {L.KVR + 4096 - 128}")
        p(f"s_add_u32 s{t[15]}, s{t[14]}, 4096"); p(f"s_add_u32 s{t[17]}, s{t[16]}, 4096")
        p(f"buffer_store_dwordx4 {vr(o,4)}, v{vsk}, s[{WS}:{WS+3}], s{t[14]} offen sc1")
        p(f"buffer_store_dwordx4 {vr(o+4,4)}, v{vsk}, s[{WS}:{WS+3}], s{t[15]} offen sc1")
        p("s_waitcnt vmcnt(16)")
        p(f"s_mov_b32 s{t[18]}, 0x05040100"); p(f"s_mov_b32 s{t[19]}, 0x07060302")
        for q in range(4):
            p(f"v_perm_b32 v{o+8+q}, v{rx+2*q+1}, v{rx+2*q}, s{t[18]}")
            p(f"v_perm_b32 v{o+12+q}, v{rx+2*q+1}, v{rx+2*q}, s{t[19]}")
        p(f"buffer_store_dwordx4 {vr(o+8,4)}, v{vsx}, s[{WS}:{WS+3}], s{t[16]} offen sc1")
        p(f"buffer_store_dwordx4 {vr(o+12,4)}, v{vsx}, s[{WS}:{WS+3}], s{t[17]} offen sc1")
        p("s_waitcnt vmcnt(16)")
        X = Kp
        for r in range(2):
            for q in range(4): self.unpack(X + 8 * r + 2 * q, X + 8 * r + 2 * q + 1, rst + 4 * r + q)
        S = Vp; T2 = Vp + 4
        for r in range(2):
            p(f"v_pk_add_f32 {vr(S+2*r,2)}, {vr(X+8*r,2)}, {vr(X+8*r+2,2)}")
            p(f"v_pk_add_f32 {vr(S+2*r,2)}, {vr(S+2*r,2)}, {vr(X+8*r+4,2)}")
            p(f"v_pk_add_f32 {vr(S+2*r,2)}, {vr(S+2*r,2)}, {vr(X+8*r+6,2)}")
            p(f"v_add_f32 v{S+2*r}, v{S+2*r}, v{S+2*r+1}")
        self.allreduce([S, S + 2], [T2, T2 + 1])
        for r in range(2):
            p(f"v_mul_f32 v{S+2*r}, {-1.0/512:.10g}, v{S+2*r}")
        for r in range(2):
            for q in range(4):
                p(f"v_pk_add_f32 {vr(X+8*r+2*q,2)}, {vr(X+8*r+2*q,2)}, {vr(S+2*r,2)} op_sel_hi:[1,0]")
        Q = Vp + 8
        for r in range(2):
            p(f"v_pk_mul_f32 {vr(Q+2*r,2)}, {vr(X+8*r,2)}, {vr(X+8*r,2)}")
            for q in range(1, 4):
                p(f"v_pk_fma_f32 {vr(Q+2*r,2)}, {vr(X+8*r+2*q,2)}, {vr(X+8*r+2*q,2)}, {vr(Q+2*r,2)}")
            p(f"v_add_f32 v{Q+2*r}, v{Q+2*r}, v{Q+2*r+1}")
        self.allreduce([Q, Q + 2], [T2, T2 + 1])
        p(f"v_mov_b32 v{T2}, 1e-5")
        R = Vp + 12
        for r in range(2):
            p(f"v_mov_b32 v{T2+1}, {1.0/512:.10g}")
            p(f"v_fma_f32 v{Q+2*r}, v{Q+2*r}, v{T2+1}, v{T2}")
            p(f"v_rsq_f32 v{R+r}, v{Q+2*r}")
        for r in range(2):
            p(f"v_mul_f32 v{R+2+r}, v{S+2*r}, v{R+r}")
        p(f"s_lshl_b32 s{t[3]}, s2, 5"); p(f"s_lshl_b32 s{t[4]}, s{sWAVE}, 3"); p(f"s_add_u32 s{t[3]}, s{t[3]}, s{t[4]}"); p(f"s_add_u32 s{t[3]}, s{t[3]}, {L.ST1}")
        p(f"s_add_u32 s{t[4]}, s{t[3]}, 8192")
        vz = V(); self.vz = vz
        p(f"v_mov_b32 v{vz}, 0")
        p("s_mov_b64 exec, 1")
        p(f"buffer_store_dwordx2 {vr(R,2)}, v{vz}, s[{WS}:{WS+3}], s{t[3]} offen sc1")
        p(f"buffer_store_dwordx2 {vr(R+2,2)}, v{vz}, s[{WS}:{WS+3}], s{t[4]} offen sc1")
        p("s_mov_b64 exec, -1")
        p("s_waitcnt vmcnt(16)")
        p(f"v_lshlrev_b32 v{vtmp}, 3, v1"); p(f"v_add_u32 v{vtmp}, s{t[11]}, v{vtmp}")
        F = Kp
        for xx in range(2):
            for q in range(2):
                p(f"ds_read_b64_tr_b16 {vr(F+4*xx+2*q,2)}, v{vtmp} offset:{xx*1024+q*512}")
        p(f"s_lshl_b32 s{t[9]}, s{t[7]}, 14"); p(f"s_lshl_b32 s{t[10]}, s{t[5]}, 10"); p(f"s_add_u32 s{t[9]}, s{t[9]}, s{t[10]}"); p(f"s_add_u32 s{t[9]}, s{t[9]}, {L.WIN}")
        p(f"s_add_u32 s{t[10]}, s{t[9]}, 16384"); p(f"s_cmp_eq_u32 s{sWAVE}, 3"); p(f"s_cselect_b32 s{t[10]}, {L.OOB}, s{t[10]}")
        p("s_waitcnt lgkmcnt(0)")
        p(f"buffer_store_dwordx4 {vr(F,4)}, v{vl16}, s[{WS}:{WS+3}], s{t[9]} offen sc1")
        p(f"buffer_store_dwordx4 {vr(F+4,4)}, v{vl16}, s[{WS}:{WS+3}], s{t[10]} offen sc1")
        p(f"s_mul_i32 s{sE}, s{sE}, 0x9E3779B1"); p(f"s_add_u32 s{sE}, s{sE}, 0x7F4A7C15")
        lab = p.newlabel("L_c2")
        p("s_cmp_lt_u32 s2, 8"); p(f"s_cbranch_scc0 {lab}")
        p(f"s_lshl_b32 s{t[3]}, s{sE}, 6"); p(f"v_mov_b32 v{vtmp}, s{t[3]}")
        p(f"s_lshl_b32 s{t[4]}, s2, 8"); p(f"s_add_u32 s{t[4]}, s{t[4]}, {L.C2}")
        p("s_mov_b64 exec, 1")
        p(f"buffer_store_dword v{vtmp}, v{vz}, s[{WS}:{WS+3}], s{t[4]} offen sc1")
        p("s_mov_b64 exec, -1")
        p.label(lab)
        rm = V(64, 2); rc = V()
        nomod1 = p.newlabel("L_nomod1"); j1 = p.newlabel("L_j1")
        p("s_cmp_lt_u32 s2, 48"); p(f"s_cbranch_scc0 {nomod1}")
        self.srd(SA, P_WMOD, 512 * 6144); self.srd(SB, P_C, 1024)
        vm = V()
        p(f"v_lshlrev_b32 v{vtmp}, 2, v0")
        p(f"buffer_load_dword v{rc}, v{vtmp}, s[{SB}:{SB+3}], 0 offen")
        p(f"v_lshrrev_b32 v{vm}, 3, v0"); p(f"v_mul_u32_u24 v{vm}, {16*6144}, v{vm}")
        p(f"v_and_b32 v{vtmp}, 7, v0"); p(f"v_lshl_add_u32 v{vm}, v{vtmp}, 4, v{vm}")
        p(f"s_lshl_b32 s{t[3]}, s2, 7")
        for n in range(16):
            p(f"buffer_load_dwordx4 {vr(rm+4*n,4)}, v{vm}, s[{SA}:{SA+3}], s{t[3]} offen")
            if n < 15: p(f"s_add_u32 s{t[3]}, s{t[3]}, 6144")
        p("s_waitcnt vmcnt(17)")
        p(f"s_branch {j1}")
        p.label(nomod1)
        p("s_waitcnt vmcnt(0)")
        p.label(j1)
        p("s_barrier")
        lab = p.newlabel("L_f1")
        p(f"s_cmp_eq_u32 s{sWAVE}, 0"); p(f"s_cbranch_scc0 {lab}")
        p(f"v_mov_b32 v{vtmp}, s{sE}"); p(f"s_lshl_b32 s{t[3]}, s2, 7"); p(f"s_add_u32 s{t[3]}, s{t[3]}, {L.F1}")
        p("s_mov_b64 exec, 1")
        p(f"buffer_store_dword v{vtmp}, v{vz}, s[{WS}:{WS+3}], s{t[3]} offen sc1")
        p("s_mov_b64 exec, -1")
        p.label(lab)
        self.stamp(vtmp)
        lab = p.newlabel("L_fix")
        p(f"s_cmp_eq_u32 s{sWAVE}, 0"); p(f"s_cbranch_scc0 {lab}")
        p("s_mov_b64 exec, 1")
        for ch in range(2):
            b = rl + 20 * ch
            for k in range(4): p(f"v_mov_b32 v{b+16+k}, v{b+k}")
            for q in (3, 2, 1):
                for k in range(4):
                    src = k - (4 - q)
                    p(f"v_mov_b32 v{b+4*q+k}, " + ("0" if src < 0 else f"v{b+16+src}"))
            for k in range(4): p(f"v_mov_b32 v{b+k}, 0")
        p("s_mov_b64 exec, -1")
        p.label(lab)
        vc = V(); E = V(4, 2); E2 = V(4, 2)
        p(f"v_lshlrev_b32 v{vc}, 4, v0"); p(f"v_add_u32 v{vc}, 48, v{vc}")
        for ch in range(2):
            b = rl + 20 * ch
            if ch == 1: p(f"v_add_u32 v{vc}, {8*KC_STRIDE}, v{vc}")
            for q in range(4):
                e = E if q % 2 == 0 else E2
                for k in range(4): p(f"v_alignbit_b32 v{e+k}, v{b+4*(q+1)+k}, v{b+4*q+k}, 16")
                p(f"ds_write_b128 v{vc}, {vr(e,4)} offset:{KC + (2*q)*KC_STRIDE}")
                p(f"ds_write_b128 v{vc}, {vr(b+4*(q+1),4)} offset:{KC + (2*q + 1)*KC_STRIDE}")
        Z = V(4, 2)
        for k in range(4): p(f"v_mov_b32 v{Z+k}, 0")
        p(f"v_lshrrev_b32 v{vtmp}, 2, v0"); p(f"v_mul_u32_u24 v{vtmp}, {KC_STRIDE}, v{vtmp}")
        p(f"v_and_b32 v{vc}, 3, v0"); p(f"v_lshl_add_u32 v{vtmp}, v{vc}, 4, v{vtmp}")
        p(f"v_cmp_gt_u32 vcc, 3, v{vc}"); p(f"v_cmp_gt_u32 s[{sX}:{sX+1}], 64, v0"); p(f"s_and_b64 vcc, vcc, s[{sX}:{sX+1}]")
        lab = p.newlabel("L_z1")
        p(f"s_and_saveexec_b64 s[{sX}:{sX+1}], vcc"); p(f"s_cbranch_execz {lab}")
        p(f"ds_write_b128 v{vtmp}, {vr(Z,4)} offset:{KC}")
        p.label(lab); p(f"s_mov_b64 exec, s[{sX}:{sX+1}]")
        p(f"v_and_b32 v{vc}, 127, v0"); p(f"v_lshrrev_b32 v{vtmp}, 7, v0"); p(f"v_mul_u32_u24 v{vtmp}, {KVL_STRIDE}, v{vtmp}")
        p(f"v_lshl_add_u32 v{vtmp}, v{vc}, 4, v{vtmp}"); p(f"v_add_u32 v{vtmp}, {KVL + 5120}, v{vtmp}")
        p(f"v_cmp_gt_u32 vcc, 80, v{vc}")
        lab = p.newlabel("L_z2")
        p(f"s_and_saveexec_b64 s[{sX}:{sX+1}], vcc"); p(f"s_cbranch_execz {lab}")
        p(f"ds_write_b128 v{vtmp}, {vr(Z,4)}")
        p.label(lab); p(f"s_mov_b64 exec, s[{sX}:{sX+1}]")
        nomod2 = p.newlabel("L_nomod2")
        p("s_cmp_lt_u32 s2, 48"); p(f"s_cbranch_scc0 {nomod2}")
        p("s_waitcnt vmcnt(16)")
        c0 = E; c1 = E + 1; e0 = E2; e1 = E2 + 1
        self.unpack(c0, c1, rc)
        for c, e in ((c0, e0), (c1, e1)): p(f"v_mul_f32 v{e}, {-1.4426950408889634:.10g}, v{c}")
        for e in (e0, e1): p(f"v_exp_f32 v{e}, v{e}")
        for e in (e0, e1): p(f"v_add_f32 v{e}, 1.0, v{e}")
        for e in (e0, e1): p(f"v_rcp_f32 v{e}, v{e}")
        p(f"v_mul_f32 v{c0}, v{c0}, v{e0}"); p(f"v_mul_f32 v{c1}, v{c1}, v{e1}")
        p(f"v_cvt_pk_bf16_f32 v{e0}, v{c0}, v{c1}")
        self.unpack(c0, c1, e0)
        p(f"v_lshlrev_b32 v{vtmp}, 3, v0")
        p(f"v_add_u32 v{vtmp}, {L_SILU}, v{vtmp}")
        p(f"ds_write_b64 v{vtmp}, {vr(c0,2)}")
        p("s_waitcnt lgkmcnt(0)"); p("s_barrier")
        SV = Kp
        p(f"v_lshrrev_b32 v{vtmp}, 3, v0"); p(f"v_lshlrev_b32 v{vtmp}, 6, v{vtmp}"); p(f"v_add_u32 v{vtmp}, {L_SILU}, v{vtmp}")
        for q in range(4): p(f"ds_read_b128 {vr(SV+4*q,4)}, v{vtmp} offset:{16*q}")
        A = Vp; U8 = Vp + 8
        for k in range(8): p(f"v_mov_b32 v{A+k}, 0")
        p("s_waitcnt lgkmcnt(0)")
        for n in range(16):
            p(f"s_waitcnt vmcnt({15-n})")
            for q in range(4): self.unpack(U8 + 2 * q, U8 + 2 * q + 1, rm + 4 * n + q)
            sv = SV + (n & ~1)
            sel = "op_sel_hi:[1,0,1]" if n % 2 == 0 else "op_sel:[0,1,0] op_sel_hi:[1,1,1]"
            for q in range(4): p(f"v_pk_fma_f32 {vr(A+2*q,2)}, {vr(U8+2*q,2)}, {vr(sv,2)}, {vr(A+2*q,2)} {sel}")
        p(f"v_lshlrev_b32 v{vtmp}, 5, v0"); p(f"v_add_u32 v{vtmp}, {L_MODP}, v{vtmp}")
        p(f"ds_write_b128 v{vtmp}, {vr(A,4)}"); p(f"ds_write_b128 v{vtmp}, {vr(A+4,4)} offset:16")
        p("s_waitcnt lgkmcnt(0)"); p("s_barrier")
        p(f"s_cmp_eq_u32 s{sWAVE}, 0"); p(f"s_cbranch_scc0 {nomod2}")
        p(f"v_lshlrev_b32 v{vtmp}, 2, v1"); p(f"v_add_u32 v{vc}, {L_MODP}, v{vtmp}")
        for n in range(32): p(f"ds_read_b32 v{rm+n}, v{vc} offset:{256*n}")
        p("s_waitcnt lgkmcnt(0)")
        w = 32
        while w > 1:
            w //= 2
            for n in range(w): p(f"v_add_f32 v{rm+n}, v{rm+n}, v{rm+n+w}")
        p(f"v_cvt_pk_bf16_f32 v{rm}, v{rm}, v{rm}"); p(f"v_lshlrev_b32 v{rm}, 16, v{rm}")
        p(f"s_lshr_b32 s{t[3]}, s2, 3"); p(f"s_cmp_eq_u32 s{t[3]}, 1"); p(f"s_cselect_b32 s{t[4]}, 1.0, 0")
        p(f"s_cmp_eq_u32 s{t[3]}, 4"); p(f"s_cselect_b32 s{t[4]}, 1.0, s{t[4]}")
        p(f"v_add_f32 v{rm}, s{t[4]}, v{rm}")
        p(f"v_cvt_pk_bf16_f32 v{rm}, v{rm}, v{rm}"); p(f"v_lshlrev_b32 v{rm}, 16, v{rm}")
        p(f"s_lshl_b32 s{t[3]}, s2, 8"); p(f"s_add_u32 s{t[3]}, s{t[3]}, {L.MOD}")
        p(f"buffer_store_dword v{rm}, v{vtmp}, s[{WS}:{WS+3}], s{t[3]} offen sc1")
        p("s_waitcnt vmcnt(0)")
        p(f"v_mov_b32 v{vtmp}, s{sE}"); p(f"s_lshl_b32 s{t[3]}, s2, 7"); p(f"s_add_u32 s{t[3]}, s{t[3]}, {L.FM}")
        p("s_mov_b64 exec, 1")
        p(f"buffer_store_dword v{vtmp}, v{vz}, s[{WS}:{WS+3}], s{t[3]} offen sc1")
        p("s_mov_b64 exec, -1")
        p.label(nomod2)
        self.vhi = max(self.vhi, V.hi)


    def phase1(self):
        p = self.p; t = sT
        V = Alloc(2, VLIM, 'v')
        vtmp, vtmp2, vz, vl16 = V(), V(), V(), V()
        self.vz = vz; self.vl16 = vl16
        p(f"v_mov_b32 v{vz}, 0"); p(f"v_lshlrev_b32 v{vl16}, 4, v1")
        sD0 = self.sD0
        sCH, sHALF, sD = 89, 90, 91
        p(f"s_lshr_b32 s{sCH}, s{sWAVE}, 1"); p(f"s_and_b32 s{sHALF}, s{sWAVE}, 1"); p(f"s_add_u32 s{sD}, s{sD0}, s{sCH}")
        pv = V(5)
        lab = p.newlabel("L_s1")
        p(f"s_cmp_eq_u32 s{sWAVE}, 0"); p(f"s_cbranch_scc0 {lab}")
        p(f"v_and_b32 v{vtmp}, 31, v1"); p(f"v_lshlrev_b32 v{vtmp}, 10, v{vtmp}")
        p(f"s_and_b32 s{t[0]}, s2, 7"); p(f"s_lshl_b32 s{t[0]}, s{t[0]}, 7"); p(f"s_add_u32 s{t[0]}, s{t[0]}, {L.F1}")
        self.poll(vtmp, t[0], 1, 0, pv, sE, "s1")
        p.label(lab)
        p("s_barrier")
        self.stamp(0)
        rkv = V(8, 2); rx = V(8, 2)
        p(f"s_lshl_b32 s{t[0]}, s{sD}, 12"); p(f"s_lshl_b32 s{t[1]}, s{sHALF}, 11"); p(f"s_add_u32 s{t[1]}, s{t[1]}, s{t[0]}"); p(f"s_add_u32 s{t[1]}, s{t[1]}, {L.KVR}")
        p(f"buffer_load_dwordx4 {vr(rkv,4)}, v{vl16}, s[{WS}:{WS+3}], s{t[1]} offen sc1")
        p(f"buffer_load_dwordx4 {vr(rkv+4,4)}, v{vl16}, s[{WS}:{WS+3}], s{t[1]} offen offset:1024 sc1")
        sCX, sCY = 92, 93
        p(f"s_sub_u32 s{sCX}, 3, s{sHALF}"); p(f"s_mov_b32 s{sCY}, s{sHALF}")
        va, vh = V(), V()
        p(f"v_and_b32 v{va}, 15, v1"); p(f"v_lshrrev_b32 v{vh}, 4, v1")
        ve2 = V()
        p(f"v_lshlrev_b32 v{ve2}, 6, v{va}"); p(f"v_lshl_add_u32 v{ve2}, v{vh}, 3, v{ve2}")
        sXO = [94, 95]
        for k, sc in enumerate((sCX, sCY)):
            p(f"s_lshl_b32 s{sXO[k]}, s{sc}, 10"); p(f"s_add_u32 s{sXO[k]}, s{sXO[k]}, s{t[0]}")
            p(f"s_add_u32 s{t[2]}, s{sXO[k]}, {L.XT}")
            for r in range(2):
                p(f"buffer_load_dwordx2 {vr(rx+4*k+2*r,2)}, v{ve2}, s[{WS}:{WS+3}], s{t[2]} offen offset:{32*r} sc1")
        lab = p.newlabel("L_s1b")
        p(f"s_cmp_eq_u32 s{sWAVE}, 0"); p(f"s_cbranch_scc0 {lab}")
        p(f"v_lshlrev_b32 v{vtmp}, 7, v1"); p(f"v_min_u32 v{vtmp2}, {47*128}, v{vtmp}")
        p(f"s_mov_b32 s{t[3]}, {L.F1}")
        self.poll([vtmp] * 4 + [vtmp2], t[3], 5, 8192, pv, sE, "s1b")
        p.label(lab)
        p(f"v_lshrrev_b32 v{vtmp}, 2, v1"); p(f"v_add_u32 v{vtmp}, v{vtmp}, v1"); p(f"v_lshlrev_b32 v{vtmp}, 4, v{vtmp}")
        p(f"s_mul_i32 s{t[4]}, s{sCH}, {KVL_STRIDE}"); p(f"s_add_u32 s{t[4]}, s{t[4]}, {KVL}")
        p(f"s_mul_i32 s{t[5]}, s{sHALF}, 2560"); p(f"s_add_u32 s{t[5]}, s{t[5]}, s{t[4]}")
        p(f"v_add_u32 v{vtmp}, s{t[5]}, v{vtmp}")
        p("s_waitcnt vmcnt(4)")
        p(f"ds_write_b128 v{vtmp}, {vr(rkv,4)}"); p(f"ds_write_b128 v{vtmp}, {vr(rkv+4,4)} offset:1280")
        vA, vBX, vBY, vKX, vKY = V(), V(), V(), V(), V()
        p(f"v_and_b32 v{vtmp}, 7, v1"); p(f"v_mul_u32_u24 v{vA}, {KC_STRIDE}, v{vtmp}")
        p(f"v_lshl_add_u32 v{vA}, v{vh}, 8, v{vA}")
        p(f"v_bfe_u32 v{vtmp}, v1, 3, 1"); p(f"v_lshl_add_u32 v{vA}, v{vtmp}, 4, v{vA}")
        p(f"s_mul_i32 s{t[5]}, s{sCH}, {8*KC_STRIDE}"); p(f"v_add_u32 v{vA}, s{t[5]}, v{vA}")
        p(f"v_lshlrev_b32 v{vtmp}, 2, v{vh}"); p(f"v_sub_u32 v{vtmp}, v{vtmp}, v{va}"); p(f"v_add_u32 v{vtmp}, 63, v{vtmp}"); p(f"v_mul_u32_u24 v{vtmp}, 80, v{vtmp}")
        p(f"v_mul_u32_u24 v{vtmp2}, 80, v{va}"); p(f"v_lshl_add_u32 v{vtmp2}, v{vh}, 3, v{vtmp2}"); p(f"v_sub_u32 v{vtmp2}, 5064, v{vtmp2}")
        for sc, vb, vk in ((sCX, vBX, vKX), (sCY, vBY, vKY)):
            p(f"s_mul_i32 s{t[5]}, s{sc}, 1280"); p(f"s_sub_u32 s{t[5]}, s{t[4]}, s{t[5]}")
            p(f"v_add_u32 v{vb}, s{t[5]}, v{vtmp}"); p(f"v_add_u32 v{vk}, s{t[5]}, v{vtmp2}")
        p("s_waitcnt lgkmcnt(0)")
        p("s_barrier")
        self.stamp(0)
        rr = V(16, 2); rm = V(16, 2); msc = V(4)
        p(f"v_lshlrev_b32 v{vtmp}, 1, v{ve2}")
        for k, sc in enumerate((sCX, sCY)):
            p(f"s_lshl_b32 s{t[0]}, s{sc}, 11"); p(f"s_add_u32 s{t[0]}, s{t[0]}, {L.ST1}"); p(f"s_add_u32 s{t[1]}, s{t[0]}, 8192")
            for r in range(2):
                p(f"buffer_load_dwordx4 {vr(rr+8*k+4*r,4)}, v{vtmp}, s[{WS}:{WS+3}], s{t[0]} offen offset:{64*r} sc1")
                p(f"buffer_load_dwordx4 {vr(rm+8*k+4*r,4)}, v{vtmp}, s[{WS}:{WS+3}], s{t[1]} offen offset:{64*r} sc1")
        p(f"s_lshl_b32 s{t[0]}, s{sD}, 2"); p(f"s_add_u32 s{t[0]}, s{t[0]}, {L.MOD}"); p(f"s_add_u32 s{t[1]}, s{t[0]}, 4096")
        p(f"buffer_load_dword v{msc+0}, v{vz}, s[{WS}:{WS+3}], s{t[0]} offen sc1")
        p(f"buffer_load_dword v{msc+1}, v{vz}, s[{WS}:{WS+3}], s{t[0]} offen offset:2048 sc1")
        p(f"buffer_load_dword v{msc+2}, v{vz}, s[{WS}:{WS+3}], s{t[1]} offen sc1")
        self.srd(SA, P_D, 1024)
        p(f"s_lshl_b32 s{t[0]}, s{sD}, 1")
        p(f"buffer_load_ushort v{msc+3}, v{vz}, s[{SA}:{SA+3}], s{t[0]} offen")
        nyoung = 0
        if self.upto >= 2:
            p(f"v_lshrrev_b32 v{vtmp}, 3, v0"); p(f"v_lshlrev_b32 v{vtmp}, 2, v{vtmp}")
            p(f"s_mov_b32 s{t[0]}, {L.MOD + 4*2048}"); p(f"s_mov_b32 s{t[1]}, {L.MOD + 3*2048}")
            for n in range(16):
                p(f"buffer_load_dword v{PV_CB+n}, v{vtmp}, s[{WS}:{WS+3}], s{t[0]} offen offset:{128*n} sc1")
            p(f"v_lshlrev_b32 v{vtmp2}, 3, v0")
            p(f"buffer_load_dwordx2 {vr(PV_AUG,2)}, v{vtmp2}, s[{WS}:{WS+3}], s{t[0]} offen sc1")
            p(f"buffer_load_dwordx2 {vr(PV_AUG+2,2)}, v{vtmp2}, s[{WS}:{WS+3}], s{t[1]} offen sc1")
            nyoung = self.win_loads(0)
        acc = V(16, 4)
        for k in range(16): p(f"v_mov_b32 v{acc+k}, 0")
        NA, NB, PD = 9, 4, 3
        Ar = [V(4, 2) for _ in range(NA)]
        Br = [[V(4, 2) for _ in range(NB)] for _ in range(2)]
        kvv = V(8, 2)
        epi = p.newlabel("L_cepi"); h1 = p.newlabel("L_ch1")
        p(f"s_cmp_eq_u32 s{sHALF}, 1"); p(f"s_cbranch_scc1 {h1}")
        for half in range(2):
            if half == 1: p.label(h1)
            nq = [4 - half, 1 + half]
            steps = [(q, tt) for q in range(nq[0]) for tt in range(16)]
            reads = []
            aslot = {}; na = 0; nb = [0, 0]; bslot = {}
            for (q, tt) in steps:
                lst = []
                for tau in ([0, 1, 2] if tt == 0 else [tt + 2]):
                    aslot[(q, tau)] = Ar[na % NA]; na += 1
                    lst.append((('A', q, tau), f"ds_read_b128 {vr(aslot[(q,tau)],4)}, v{vA} offset:{16*(64*q+tau)}"))
                for k, vb in enumerate((vBX, vBY)):
                    if q < nq[k]:
                        bslot[(k, q, tt)] = Br[k][nb[k] % NB]; nb[k] += 1
                        lst.append((('B', k, q, tt), f"ds_read_b128 {vr(bslot[(k,q,tt)],4)}, v{vb} offset:{1280*q + 16*(tt + (tt >> 2))}"))
                reads.append(lst)
            issued = []
            sidx = {st: n for n, st in enumerate(steps)}
            def last_use(key):
                if key[0] == 'A': return sidx[(key[1], min(key[2], 15))]
                return sidx[(key[2], key[3])]
            occ = {}
            def issue(n):
                if n < len(steps):
                    for key, txt in reads[n]:
                        slot = aslot[key[1:]] if key[0] == 'A' else bslot[key[1:]]
                        if slot in occ: assert last_use(occ[slot]) < n - PD, (key, occ[slot])
                        occ[slot] = key
                        p(txt); issued.append(key)
            for n in range(PD): issue(n)
            for n, (q, tt) in enumerate(steps):
                issue(n + PD)
                needk = [('A', q, tt), ('A', q, tt + 2)] + [('B', k, q, tt) for k in range(2) if q < nq[k]]
                last = max(issued.index(x) for x in needk)
                cnt = len(issued) - 1 - last
                assert cnt <= 15
                p(f"s_waitcnt lgkmcnt({cnt})")
                for k in range(2):
                    if q < nq[k]:
                        for r in range(2):
                            d = acc + 8 * k + 4 * r
                            p(f"v_mfma_f32_16x16x32_bf16 {vr(d,4)}, {vr(aslot[(q,tt+2*r)],4)}, {vr(bslot[(k,q,tt)],4)}, {vr(d,4)}")
            if half == 0: p(f"s_branch {epi}")
        p.label(epi)
        self.stamp(0)
        for k, vk in enumerate((vKX, vKY)):
            for r in range(2):
                p(f"ds_read_b64 {vr(kvv+4*k+2*r,2)}, v{vk} offset:{32*(1-r)}")
        p(f"s_waitcnt vmcnt({nyoung}) lgkmcnt(0)")
        p(f"v_lshlrev_b32 v{msc+3}, 16, v{msc+3}")
        X = V(4, 2); KV = V(4, 2); H = V(4, 2); O = V(8, 2)
        sa, ca1, ga, DD = msc, msc + 1, msc + 2, msc + 3
        def bc(reg):
            b = reg & ~1
            return vr(b, 2), reg & 1
        for k in range(2):
            for r in range(2):
                a0 = acc + 8 * k + 4 * r; x0 = rx + 4 * k + 2 * r; k0 = kvv + 4 * k + 2 * r
                self.unpack(X, X + 1, x0); self.unpack(X + 2, X + 3, x0 + 1)
                self.unpack(KV + 1, KV, k0 + 1); self.unpack(KV + 3, KV + 2, k0)
                for hh in range(2):
                    o = 2 * hh
                    p(f"v_pk_fma_f32 {vr(H+o,2)}, {vr(X+o,2)}, {vr(rr+8*k+4*r+o,2)}, {vr(rm+8*k+4*r+o,2)}")
                for hh in range(2):
                    o = 2 * hh
                    (c1, s1), (c2, s2) = bc(ca1), bc(sa)
                    p(f"v_pk_fma_f32 {vr(H+o,2)}, {vr(H+o,2)}, {c1}, {c2} op_sel:[0,{s1},{s2}] op_sel_hi:[1,{s1},{s2}]")
                    (c1, s1) = bc(DD)
                    p(f"v_pk_fma_f32 {vr(KV+o,2)}, {vr(KV+o,2)}, {c1}, {vr(a0+o,2)} op_sel:[0,{s1},0] op_sel_hi:[1,{s1},1]")
                for hh in range(2):
                    o = 2 * hh
                    p(f"v_pk_mul_f32 {vr(H+o,2)}, {vr(H+o,2)}, {vr(KV+o,2)}")
                for hh in range(2):
                    o = 2 * hh
                    (c1, s1) = bc(ga)
                    p(f"v_pk_fma_f32 {vr(H+o,2)}, {vr(H+o,2)}, {c1}, {vr(X+o,2)} op_sel:[0,{s1},0] op_sel_hi:[1,{s1},1]")
                oo = O + 4 * k + 2 * r
                p(f"v_cvt_pk_bf16_f32 v{oo}, v{H}, v{H+1}"); p(f"v_cvt_pk_bf16_f32 v{oo+1}, v{H+2}, v{H+3}")
        vst = V()
        p(f"v_lshlrev_b32 v{vst}, 6, v{va}"); p(f"v_and_b32 v{vtmp}, 1, v{vh}"); p(f"v_lshl_add_u32 v{vst}, v{vtmp}, 5, v{vst}")
        p(f"v_lshrrev_b32 v{vtmp}, 1, v{vh}"); p(f"v_lshl_add_u32 v{vst}, v{vtmp}, 4, v{vst}")
        for k in range(2):
            b = O + 4 * k
            p(f"v_permlane16_swap_b32 v{b}, v{b+2}"); p(f"v_permlane16_swap_b32 v{b+1}, v{b+3}")
            p(f"s_add_u32 s{t[0]}, s{sXO[k]}, {L.X1T}")
            p(f"buffer_store_dwordx4 {vr(b,4)}, v{vst}, s[{WS}:{WS+3}], s{t[0]} offen sc1")
        ny2 = 0
        if self.upto >= 2:
            ny2 = self.win_loads(1)
        p(f"s_waitcnt vmcnt({ny2})")
        p("s_barrier")
        lab = p.newlabel("L_a2")
        p(f"s_cmp_eq_u32 s{sWAVE}, 0"); p(f"s_cbranch_scc0 {lab}")
        p(f"s_and_b32 s{t[0]}, s2, 7"); p(f"s_lshl_b32 s{t[0]}, s{t[0]}, 8"); p(f"s_add_u32 s{t[0]}, s{t[0]}, {L.C2}")
        p(f"v_mov_b32 v{vtmp}, 1"); p("s_mov_b64 exec, 1")
        p(f"buffer_atomic_add v{vtmp}, v{vz}, s[{WS}:{WS+3}], s{t[0]} offen sc1")
        p("s_mov_b64 exec, -1")
        p.label(lab)
        self.stamp(0)

    def win_loads(self, which):
        p = self.p; t = sT
        p(f"s_mul_i32 s{t[6]}, s{sJ}, 7"); p(f"s_lshl_b32 s{t[7]}, s{sWAVE}, 1"); p(f"s_add_u32 s{t[6]}, s{t[6]}, s{t[7]}")
        p(f"s_lshl_b32 s{t[6]}, s{t[6]}, 14"); p(f"s_add_u32 s{t[6]}, s{t[6]}, {L.WIN + (56*16384 if which == 0 else 0)}")
        p(f"s_add_u32 s{t[7]}, s{t[6]}, 16384"); p(f"s_cmp_eq_u32 s{sWAVE}, 3"); p(f"s_cselect_b32 s{t[7]}, {L.OOB}, s{t[7]}")
        for x in range(2):
            for ks in range(16):
                if ks and ks % 4 == 0: p(f"s_add_u32 s{t[6+x]}, s{t[6+x]}, 4096")
                a = 128 * which + 64 * x + 4 * ks
                p(f"buffer_load_dwordx4 {ar(a,4)}, v{self.vl16}, s[{WS}:{WS+3}], s{t[6+x]} offen offset:{(ks%4)*1024} sc1")
        return 32


    def gelu(self, pairs, tmp, c1v, c2s):
        p = self.p
        c1p, c1s = vr(c1v & ~1, 2), c1v & 1
        for x, u in zip(pairs, tmp): p(f"v_pk_mul_f32 {vr(u,2)}, {vr(x,2)}, {vr(x,2)}")
        for x, u in zip(pairs, tmp): p(f"v_pk_fma_f32 {vr(u,2)}, {vr(u,2)}, s[{c2s}:{c2s+1}], {c1p} op_sel:[0,0,{c1s}] op_sel_hi:[1,0,{c1s}]")
        for x, u in zip(pairs, tmp): p(f"v_pk_mul_f32 {vr(u,2)}, {vr(u,2)}, {vr(x,2)}")
        for x, u in zip(pairs, tmp): p(f"v_exp_f32 v{u}, v{u}"); p(f"v_exp_f32 v{u+1}, v{u+1}")
        for x, u in zip(pairs, tmp): p(f"v_pk_add_f32 {vr(u,2)}, {vr(u,2)}, 1.0 op_sel_hi:[1,0]")
        for x, u in zip(pairs, tmp): p(f"v_rcp_f32 v{u}, v{u}"); p(f"v_rcp_f32 v{u+1}, v{u+1}")
        for x, u in zip(pairs, tmp): p(f"v_pk_mul_f32 {vr(x,2)}, {vr(x,2)}, {vr(u,2)}")

    def wsp_loads(self, which, vw):
        p = self.p; t = sT
        for x in range(4):
            p(f"s_add_u32 s{t[8+x]}, s{sWAVE}, {x}"); p(f"s_and_b32 s{t[8+x]}, s{t[8+x]}, 3"); p(f"s_lshl_b32 s{t[8+x]}, s{t[8+x]}, 16")
            p(f"s_lshl_b32 s{t[12]}, s{sI}, 18"); p(f"s_add_u32 s{t[8+x]}, s{t[8+x]}, s{t[12]}")
            p(f"s_lshl_b32 s{t[12]}, s{sWAVE}, 10"); p(f"s_add_u32 s{t[8+x]}, s{t[8+x]}, s{t[12]}")
        for ks in range(8 * which, 8 * which + 8):
            for x in range(4):
                p(f"buffer_load_dwordx4 {ar(16*ks+4*x,4)}, v{vw}, s[{SB}:{SB+3}], s{t[8+x]} offen offset:{64*ks}")
        return 32

    def phase2(self):
        p = self.p; t = sT
        V = Alloc(2, VLIM, 'v')
        vtmp, vtmp2, vz, vl16 = V(), V(), V(), V()
        assert (vz, vl16) == (self.vz, self.vl16)
        vn, vh, vl8, vc1 = V(), V(), V(), V()
        p(f"v_and_b32 v{vn}, 15, v1"); p(f"v_lshrrev_b32 v{vh}, 4, v1"); p(f"v_lshlrev_b32 v{vl8}, 3, v1")
        p(f"v_mov_b32 v{vc1}, -2.302208198")
        sC2 = 88; p(f"s_mov_b32 s{sC2}, -0.1029432397"); p(f"s_mov_b32 s{sC2+1}, -0.1029432397")
        cs2 = V(8, 4); bi2 = V(8, 4); cs1 = V(8, 4); bi1 = V(8, 4)
        mA = V.mark()
        acc2 = V(32, 4); acc1 = V(32, 4)
        m0 = V.mark()
        V.reset(mA)
        p(f"v_cvt_pk_bf16_f32 v{PV_AUG}, v{PV_AUG}, v{PV_AUG+1}"); p(f"v_cvt_pk_bf16_f32 v{PV_AUG+2}, v{PV_AUG+2}, v{PV_AUG+3}")
        p(f"v_lshrrev_b32 v{vtmp}, 4, v0"); p(f"v_lshlrev_b32 v{vtmp}, 6, v{vtmp}")
        p(f"v_bfe_u32 v{vtmp2}, v0, 1, 2"); p(f"v_lshl_add_u32 v{vtmp}, v{vtmp2}, 4, v{vtmp}")
        p(f"v_bfe_u32 v{vtmp2}, v0, 3, 1"); p(f"v_lshl_add_u32 v{vtmp}, v{vtmp2}, 3, v{vtmp}")
        p(f"v_and_b32 v{vtmp2}, 1, v0"); p(f"v_lshl_add_u32 v{vtmp}, v{vtmp2}, 2, v{vtmp}")
        p(f"v_add_u32 v{vtmp}, {L_AUG}, v{vtmp}")
        p(f"ds_write_b32 v{vtmp}, v{PV_AUG}"); p(f"ds_write_b32 v{vtmp}, v{PV_AUG+2} offset:1024")
        for k in range(32): p(f"v_mov_b32 v{cs2+k}, 0")
        assert bi2 == cs2 + 8 and cs1 == cs2 + 16 and bi1 == cs2 + 24
        p("s_waitcnt lgkmcnt(0)"); p("s_barrier")
        p(f"v_lshlrev_b32 v{vtmp}, 4, v{vh}"); p(f"v_add_u32 v{vtmp}, {L_AUG}, v{vtmp}")
        AG = V(128, 4)
        for half in range(2):
            for ks in range(8 * half, 8 * half + 8): p(f"ds_read_b128 {vr(AG+8*ks,4)}, v{vtmp} offset:{64*ks}")
            for ks in range(8 * half, 8 * half + 7): p(f"ds_read_b128 {vr(AG+8*ks+4,4)}, v{vtmp} offset:{1024+64*ks}")
            p("s_waitcnt lgkmcnt(0)")
            ks = 8 * half + 7; p(f"ds_read_b128 {vr(AG+8*ks+4,4)}, v{vtmp} offset:{1024+64*ks}")
        p("s_waitcnt lgkmcnt(0)")
        for ks in range(16):
            for x in range(2):
                p(f"v_mfma_f32_16x16x32_bf16 {vr(cs2+4*x,4)}, {vr(AG+8*ks,4)}, {ar(64*x+4*ks,4)}, {vr(cs2+4*x,4)}")
                p(f"v_mfma_f32_16x16x32_bf16 {vr(bi2+4*x,4)}, {vr(AG+8*ks+4,4)}, {ar(64*x+4*ks,4)}, {vr(bi2+4*x,4)}")
        p("s_waitcnt vmcnt(0)")
        for ks in range(16):
            for x in range(2):
                p(f"v_mfma_f32_16x16x32_bf16 {vr(cs1+4*x,4)}, {ar(128+64*x+4*ks,4)}, {vr(AG+8*ks,4)}, {vr(cs1+4*x,4)}")
                p(f"v_mfma_f32_16x16x32_bf16 {vr(bi1+4*x,4)}, {ar(128+64*x+4*ks,4)}, {vr(AG+8*ks+4,4)}, {vr(bi1+4*x,4)}")
        V.reset(m0)
        for k in range(64): p(f"v_mov_b32 v{acc2+k}, 0")
        assert acc1 == acc2 + 32
        self.stamp(0)
        pv = V(2)
        lab = p.newlabel("L_s2")
        p(f"s_cmp_eq_u32 s{sWAVE}, 0"); p(f"s_cbranch_scc0 {lab}")
        p(f"v_min_u32 v{vtmp}, 7, v1"); p(f"v_lshlrev_b32 v{vtmp}, 8, v{vtmp}")
        p(f"s_mov_b32 s{t[0]}, {L.C2}"); p(f"s_lshl_b32 s{t[1]}, s{sE}, 6"); p(f"s_add_u32 s{t[1]}, s{t[1]}, 32")
        self.poll(vtmp, t[0], 1, 0, pv, t[1], "s2")
        p.label(lab)
        p("s_barrier")
        self.stamp(0)
        raw = V(64, 4); vx, vw = V(), V()
        p(f"v_lshrrev_b32 v{vtmp}, 3, v0"); p(f"v_and_b32 v{vtmp2}, 7, v0")
        p(f"v_lshlrev_b32 v{vx}, 12, v{vtmp}"); p(f"v_lshl_add_u32 v{vx}, v{vtmp2}, 4, v{vx}")
        p(f"s_lshl_b32 s{t[0]}, s{sI}, 7"); p(f"s_add_u32 s{t[0]}, s{t[0]}, {L.X1T}")
        for n in range(16):
            p(f"buffer_load_dwordx4 {vr(raw+4*n,4)}, v{vx}, s[{WS}:{WS+3}], s{t[0]} offen sc1")
            if n < 15: p(f"s_add_u32 s{t[0]}, s{t[0]}, {32*4096}")
        p(f"v_lshlrev_b32 v{vw}, 5, v{vtmp}"); p(f"v_and_b32 v{vtmp}, 1, v{vtmp2}"); p(f"v_lshl_add_u32 v{vw}, v{vtmp}, 4, v{vw}")
        p(f"v_lshrrev_b32 v{vtmp}, 1, v{vtmp2}"); p(f"v_mul_u32_u24 v{vtmp}, {XA_FR}, v{vtmp}"); p(f"v_add_u32 v{vw}, v{vw}, v{vtmp}")
        vw2 = V(); p(f"v_add_u32 v{vw2}, {L_XRES}, v{vw}")
        S = V(8, 2); Q = V(8, 2); Xu = [V(8, 2), V(8, 2)]; Pk = [V(4, 2), V(4, 2)]
        for n in range(16):
            X = Xu[n & 1]; PK = Pk[n & 1]
            p(f"s_waitcnt vmcnt({15-n})")
            if n % 2 == 0:
                lab = p.newlabel("L_xr")
                p(f"s_cmp_eq_u32 s{sJ}, {n//2}"); p(f"s_cbranch_scc0 {lab}")
                p(f"s_waitcnt vmcnt({14-n})")
                p(f"ds_write_b128 v{vw2}, {vr(raw+4*n,4)}"); p(f"ds_write_b128 v{vw2}, {vr(raw+4*n+4,4)} offset:{4*XA_FR}")
                p.label(lab)
            for q in range(4): self.unpack(X + 2 * q, X + 2 * q + 1, raw + 4 * n + q)
            for q in range(4):
                if n == 0: p(f"v_pk_mul_f32 {vr(Q+2*q,2)}, {vr(X+2*q,2)}, {vr(X+2*q,2)}")
                else: p(f"v_pk_fma_f32 {vr(Q+2*q,2)}, {vr(X+2*q,2)}, {vr(X+2*q,2)}, {vr(Q+2*q,2)}")
            for q in range(4):
                if n == 0: p(f"v_pk_add_f32 {vr(S+2*q,2)}, {vr(X+2*q,2)}, 0 op_sel_hi:[1,0]")
                else: p(f"v_pk_add_f32 {vr(S+2*q,2)}, {vr(S+2*q,2)}, {vr(X+2*q,2)}")
            cb = PV_CB + n; sel = cb & 1
            for q in range(4): p(f"v_pk_mul_f32 {vr(X+2*q,2)}, {vr(X+2*q,2)}, {vr(cb & ~1,2)} op_sel:[0,{sel}] op_sel_hi:[1,{sel}]")
            for q in range(4): p(f"v_cvt_pk_bf16_f32 v{PK+q}, v{X+2*q}, v{X+2*q+1}")
            p(f"ds_write_b128 v{vw}, {vr(PK,4)} offset:{L_XA + n*4*XA_FR}")
        for r in list(range(S, S + 8)) + list(range(Q, Q + 8)):
            p(f"v_add_f32_dpp v{r}, v{r}, v{r} row_ror:8 row_mask:0xf bank_mask:0xf")
        for k in range(8): p(f"v_permlane16_swap_b32 v{S+k}, v{Q+k}")
        for k in range(8): p(f"v_add_f32 v{S+k}, v{S+k}, v{Q+k}")
        for k in range(4): p(f"v_permlane32_swap_b32 v{S+k}, v{S+4+k}")
        for k in range(4): p(f"v_add_f32 v{S+k}, v{S+k}, v{S+4+k}")
        p(f"v_and_b32 v{vtmp}, 1, v{vh}"); p(f"v_lshlrev_b32 v{vtmp}, 8, v{vtmp}")
        p(f"v_and_b32 v{vtmp2}, 7, v1"); p(f"v_lshl_add_u32 v{vtmp}, v{vtmp2}, 5, v{vtmp}")
        p(f"v_lshrrev_b32 v{vtmp2}, 1, v{vh}"); p(f"v_lshl_add_u32 v{vtmp}, v{vtmp2}, 4, v{vtmp}")
        sW512 = 90
        p(f"s_lshl_b32 s{sW512}, s{sWAVE}, 9"); p(f"s_add_u32 s{t[0]}, s{sW512}, {L_STP}"); p(f"v_add_u32 v{vtmp}, s{t[0]}, v{vtmp}")
        p(f"ds_write_b128 v{vtmp}, {vr(S,4)}")
        p("s_waitcnt lgkmcnt(0)"); p("s_barrier")
        self.stamp(0)
        V.reset(m0); V.limit = PV_XRES
        vl4 = V(); T8 = V(8, 2)
        p(f"v_lshlrev_b32 v{vl4}, 2, v1"); p(f"v_add_u32 v{vtmp}, {L_STP}, v{vl4}")
        for w in range(4):
            for st in range(2): p(f"ds_read_b32 v{T8+4*st+w}, v{vtmp} offset:{w*512+st*256}")
        p(f"s_mul_i32 s{t[0]}, s{sWAVE}, {XA_FR}"); p(f"s_add_u32 s{t[0]}, s{t[0]}, {L_XRES}"); p(f"v_add_u32 v{vtmp2}, s{t[0]}, v{vl8}")
        for dt in range(4):
            p(f"ds_read_b64_tr_b16 {vr(PV_XRES+2*dt,2)}, v{vtmp2} offset:{(dt>>1)*4*XA_FR + (dt&1)*512}")
        FB = [V(16, 4), V(16, 4)]
        vl8b = V(); p(f"v_add_u32 v{vl8b}, {32*XA_FR}, v{vl8}")
        def areads(ks, buf):
            for rt in range(4):
                for q in range(2):
                    p(f"ds_read_b64_tr_b16 {vr(FB[buf]+4*rt+2*q,2)}, v{vl8 if ks < 8 else vl8b} offset:{L_XA + ((ks&7)*4+rt)*XA_FR + q*512}")
        p("s_waitcnt lgkmcnt(4)")
        areads(0, 0)
        def lnfin(T, n, r_out, m_out):
            p(f"v_add_f32 v{T}, v{T}, v{T+1}"); p(f"v_add_f32 v{T+2}, v{T+2}, v{T+3}"); p(f"v_add_f32 v{T+4}, v{T+4}, v{T+5}"); p(f"v_add_f32 v{T+6}, v{T+6}, v{T+7}")
            p(f"v_add_f32 v{T}, v{T}, v{T+2}"); p(f"v_add_f32 v{T+4}, v{T+4}, v{T+6}")
            self.lnfin2(T, T + 4, T + 1, n, r_out, m_out)
        lnfin(T8, 512, T8 + 2, T8 + 3)
        vst2 = V()
        p(f"s_add_u32 s{t[0]}, s{sW512}, {L_ST2}"); p(f"v_add_u32 v{vst2}, s{t[0]}, v{vl4}")
        p(f"ds_write_b32 v{vst2}, v{T8+2}"); p(f"ds_write_b32 v{vst2}, v{T8+3} offset:256")
        def gemm1(acc, abase, swap, first_issued, extra_after_first=0):
            for ks in range(16):
                buf = ks & 1
                if ks == 0 and not first_issued: areads(0, 0)
                if ks < 15:
                    areads(ks + 1, buf ^ 1); p("s_waitcnt lgkmcnt(8)")
                else:
                    p("s_waitcnt lgkmcnt(0)")
                for x in range(2):
                    for rt in range(4):
                        d = acc + 16 * x + 4 * rt; a = vr(FB[buf] + 4 * rt, 4); b = ar(abase + 64 * x + 4 * ks, 4)
                        if swap: a, b = b, a
                        p(f"v_mfma_f32_16x16x32_bf16 {vr(d,4)}, {a}, {b}, {vr(d,4)}")
        gemm1(acc2, 0, False, True)
        self.stamp(0)
        R2 = V(16, 4); M2 = V(16, 4); SS = V(16, 4); QQ = V(16, 4); TT = V(16, 2)
        vrow = V()
        p(f"v_lshlrev_b32 v{vrow}, 4, v{vh}"); p(f"s_add_u32 s{t[0]}, s{sW512}, {L_ST2}"); p(f"v_add_u32 v{vrow}, s{t[0]}, v{vrow}")
        for rt in range(4):
            p(f"ds_read_b128 {vr(R2+4*rt,4)}, v{vrow} offset:{64*rt}"); p(f"ds_read_b128 {vr(M2+4*rt,4)}, v{vrow} offset:{256+64*rt}")
        p("s_waitcnt lgkmcnt(0)")
        for x in range(2):
            prs = [acc2 + 16 * x + 2 * k for k in range(8)]; tmp = [TT + 2 * k for k in range(8)]
            for k in range(8):
                p(f"v_pk_fma_f32 {vr(tmp[k],2)}, {vr(M2+2*k,2)}, {vr(cs2+4*x,2)}, {vr(bi2+4*x,2)}")
            for k in range(8):
                p(f"v_pk_fma_f32 {vr(prs[k],2)}, {vr(prs[k],2)}, {vr(R2+2*k,2)}, {vr(tmp[k],2)}")
            self.gelu(prs, tmp, vc1, sC2)
            for k in range(8):
                if x == 0: p(f"v_pk_mul_f32 {vr(QQ+2*k,2)}, {vr(prs[k],2)}, {vr(prs[k],2)}")
                else:
                    p(f"v_pk_fma_f32 {vr(QQ+2*k,2)}, {vr(prs[k],2)}, {vr(prs[k],2)}, {vr(QQ+2*k,2)}")
                    p(f"v_pk_add_f32 {vr(SS+2*k,2)}, {vr(prs[k],2)}, {vr(acc2+2*k,2)}")
        for k in range(16): p(f"v_add_f32_dpp v{SS+k}, v{SS+k}, v{SS+k} row_ror:8 row_mask:0xf bank_mask:0x3")
        for k in range(16): p(f"v_add_f32_dpp v{SS+k}, v{QQ+k}, v{QQ+k} row_ror:8 row_mask:0xf bank_mask:0xc")
        for k in range(8): p(f"v_add_f32_dpp v{SS+k}, v{SS+k}, v{SS+k} row_half_mirror row_mask:0xf bank_mask:0x5")
        for k in range(8): p(f"v_add_f32_dpp v{SS+k}, v{SS+8+k}, v{SS+8+k} row_half_mirror row_mask:0xf bank_mask:0xa")
        for mod in ("quad_perm:[1,0,3,2]", "quad_perm:[2,3,0,1]"):
            for k in range(8): p(f"v_add_f32_dpp v{SS+k}, v{SS+k}, v{SS+k} {mod} row_mask:0xf bank_mask:0xf")
        p(f"v_bfe_u32 v{vtmp}, v1, 2, 2"); p(f"v_lshlrev_b32 v{vtmp}, 7, v{vtmp}"); p(f"v_lshl_add_u32 v{vtmp}, v{vh}, 4, v{vtmp}")
        p(f"s_add_u32 s{t[0]}, s{sW512}, {L_ZP}"); p(f"v_add_u32 v{vtmp}, s{t[0]}, v{vtmp}")
        p(f"ds_write_b128 v{vtmp}, {vr(SS,4)}"); p(f"ds_write_b128 v{vtmp}, {vr(SS+4,4)} offset:64")
        p("s_waitcnt lgkmcnt(0)"); p("s_barrier")
        lab = p.newlabel("L_g3")
        p(f"s_cmp_eq_u32 s{sWAVE}, 0"); p(f"s_cbranch_scc0 {lab}")
        p(f"v_add_u32 v{vtmp}, {L_ZP}, v{vl4}")
        for w in range(4):
            for st in range(2): p(f"ds_read_b32 v{T8+4*st+w}, v{vtmp} offset:{w*512+st*256}")
        p("s_waitcnt lgkmcnt(0)")
        T = T8
        p(f"v_add_f32 v{T}, v{T}, v{T+1}"); p(f"v_add_f32 v{T+2}, v{T+2}, v{T+3}"); p(f"v_add_f32 v{T+4}, v{T+4}, v{T+5}"); p(f"v_add_f32 v{T+6}, v{T+6}, v{T+7}")
        p(f"v_add_f32 v{T}, v{T}, v{T+2}"); p(f"v_add_f32 v{T+2}, v{T+4}, v{T+6}")
        p(f"v_mov_b32 v{T+1}, s{sE}"); p(f"v_mov_b32 v{T+3}, s{sE}")
        p(f"s_lshl_b32 s{t[0]}, s{sI}, 3"); p(f"s_add_u32 s{t[0]}, s{t[0]}, s{sJ}"); p(f"s_lshl_b32 s{t[0]}, s{t[0]}, 10"); p(f"s_add_u32 s{t[0]}, s{t[0]}, {L.ST3}")
        p(f"buffer_store_dwordx4 {vr(T,4)}, v{vl16}, s[{WS}:{WS+3}], s{t[0]} offen sc1")
        p.label(lab)
        self.stamp(0)
        self.srd(SB, P_WSP, 2048 * 4096)
        vwsp = V(); self.vwsp = vwsp
        p(f"v_lshlrev_b32 v{vwsp}, 12, v{vn}"); p(f"v_lshl_add_u32 v{vwsp}, v{vh}, 4, v{vwsp}")
        if self.upto >= 3: self.wsp_loads(0, vwsp)
        gemm1(acc1, 128, True, False)
        self.stamp(0)
        GR = SS
        assert QQ == SS + 16
        lp = p.newlabel("L_p3"); done = p.newlabel("L_d3")
        p(f"s_lshl_b32 s{t[0]}, s{sI}, 13"); p(f"s_add_u32 s{t[0]}, s{t[0]}, {L.ST3}"); p(f"s_add_u32 s{t[1]}, s{t[0]}, 4096")
        p(f"s_mov_b32 s{t[18]}, 0")
        p.label(lp)
        for jj in range(8):
            p(f"buffer_load_dwordx4 {vr(GR+4*jj,4)}, v{vl16}, s[{WS}:{WS+3}], s{t[jj>>2]} offen offset:{(jj&3)*1024} sc1")
        p("s_waitcnt vmcnt(0)")
        p(f"v_xor_b32 v{vtmp}, s{sE}, v{GR+1}")
        for jj in range(8):
            for o in (1, 3):
                if jj == 0 and o == 1: continue
                p(f"v_xor_b32 v{vtmp2}, s{sE}, v{GR+4*jj+o}"); p(f"v_or_b32 v{vtmp}, v{vtmp}, v{vtmp2}")
        p(f"v_cmp_ne_u32 vcc, 0, v{vtmp}"); p(f"s_cbranch_vccz {done}")
        p(f"s_add_u32 s{t[18]}, s{t[18]}, 1"); p(f"s_cmp_gt_u32 s{t[18]}, {SPIN_LIMIT}"); p(f"s_cbranch_scc1 {done}")
        p("s_sleep 1"); p(f"s_branch {lp}")
        p.label(done)
        for w in (4, 2, 1):
            for jj in range(w):
                for o in (0, 2): p(f"v_add_f32 v{GR+4*jj+o}, v{GR+4*jj+o}, v{GR+4*(jj+w)+o}")
        self.lnfin2(GR, GR + 2, GR + 1, 896, GR + 4, GR + 5)
        vst3 = V()
        p(f"v_add_u32 v{vst3}, {L_ST3 - L_ST2}, v{vst2}")
        p(f"ds_write_b32 v{vst3}, v{GR+4}"); p(f"ds_write_b32 v{vst3}, v{GR+5} offset:256")
        p("s_waitcnt lgkmcnt(0)")
        for rt in range(4):
            p(f"ds_read_b128 {vr(R2+4*rt,4)}, v{vrow} offset:{L_ST3-L_ST2+64*rt}"); p(f"ds_read_b128 {vr(M2+4*rt,4)}, v{vrow} offset:{L_ST3-L_ST2+256+64*rt}")
        vzs = V()
        p(f"v_and_b32 v{vtmp}, 1, v{vh}"); p(f"v_lshlrev_b32 v{vzs}, 9, v{vtmp}")
        p(f"v_lshrrev_b32 v{vtmp}, 1, v{vh}"); p(f"v_lshl_add_u32 v{vzs}, v{vtmp}, 8, v{vzs}"); p(f"v_lshl_add_u32 v{vzs}, v{vn}, 4, v{vzs}")
        p(f"s_lshl_b32 s{t[0]}, s{sJ}, 6"); p(f"s_lshl_b32 s{t[1]}, s{sI}, 1"); p(f"s_add_u32 s{t[0]}, s{t[0]}, s{t[1]}"); p(f"s_mul_i32 s{t[0]}, s{t[0]}, 7")
        p(f"s_lshl_b32 s{t[1]}, s{sWAVE}, 1"); p(f"s_add_u32 s{t[0]}, s{t[0]}, s{t[1]}"); p(f"s_lshl_b32 s{t[0]}, s{t[0]}, 10"); p(f"s_add_u32 s{t[0]}, s{t[0]}, {L.Z2N}")
        p(f"s_add_u32 s{t[1]}, s{t[0]}, 7168")
        p(f"s_add_u32 s{t[2]}, s{t[0]}, 1024"); p(f"s_add_u32 s{t[3]}, s{t[1]}, 1024")
        p(f"s_cmp_eq_u32 s{sWAVE}, 3"); p(f"s_cselect_b32 s{t[2]}, {L.OOB}, s{t[2]}"); p(f"s_cselect_b32 s{t[3]}, {L.OOB}, s{t[3]}")
        p("s_waitcnt lgkmcnt(0)")
        self.stamp(0)
        for x in range(2):
            for k in range(8):
                a = acc2 + 16 * x + 2 * k
                p(f"v_pk_fma_f32 {vr(a,2)}, {vr(a,2)}, {vr(R2+2*k,2)}, {vr(M2+2*k,2)}")
            for k in range(8):
                a = acc2 + 16 * x + 2 * k
                p(f"v_cvt_pk_bf16_f32 v{TT+8*x+k}, v{a}, v{a+1}")
            for kk in range(2):
                b = TT + 8 * x + 4 * kk
                p(f"v_permlane16_swap_b32 v{b}, v{b+2}"); p(f"v_permlane16_swap_b32 v{b+1}, v{b+3}")
                p(f"buffer_store_dwordx4 {vr(b,4)}, v{vzs}, s[{WS}:{WS+3}], s{t[2*x+kk]} offen sc1")
        ny = 0
        if self.upto >= 3: ny = self.wsp_loads(1, vwsp)
        p(f"s_waitcnt vmcnt({ny})"); p("s_barrier")
        lab = p.newlabel("L_f4")
        p(f"s_cmp_eq_u32 s{sWAVE}, 0"); p(f"s_cbranch_scc0 {lab}")
        p(f"s_lshl_b32 s{t[0]}, s{sJ}, 5"); p(f"s_add_u32 s{t[0]}, s{t[0]}, s{sI}"); p(f"s_lshl_b32 s{t[0]}, s{t[0]}, 7"); p(f"s_add_u32 s{t[0]}, s{t[0]}, {L.F4}")
        p(f"v_mov_b32 v{vtmp}, s{sE}"); p("s_mov_b64 exec, 1")
        p(f"buffer_store_dword v{vtmp}, v{vz}, s[{WS}:{WS+3}], s{t[0]} offen sc1")
        p("s_mov_b64 exec, -1")
        p.label(lab)
        self.stamp(0)
        RL = R2; ML = R2 + 4
        p(f"v_lshlrev_b32 v{vtmp}, 2, v{vn}"); p(f"s_add_u32 s{t[0]}, s{sW512}, {L_ST2}"); p(f"v_add_u32 v{vtmp}, s{t[0]}, v{vtmp}")
        for st in range(4):
            p(f"ds_read_b32 v{RL+st}, v{vtmp} offset:{64*st}"); p(f"ds_read_b32 v{ML+st}, v{vtmp} offset:{256+64*st}")
        p(f"s_lshl_b32 s{t[0]}, s{sWAVE}, 12"); p(f"s_add_u32 s{t[0]}, s{t[0]}, {L_Z1}"); p(f"v_add_u32 v{vtmp2}, s{t[0]}, v{vl8}")
        p("s_waitcnt lgkmcnt(0)")
        PK = M2
        for x in range(2):
            prs = [acc1 + 16 * x + 2 * k for k in range(8)]; tmp = [SS + 2 * k for k in range(8)]
            for k in range(8):
                st = k >> 1; o = 2 * (k & 1); ms = (ML + st) & 1
                p(f"v_pk_fma_f32 {vr(tmp[k],2)}, {vr(cs1+4*x+o,2)}, {vr((ML+st)&~1,2)}, {vr(bi1+4*x+o,2)} op_sel:[0,{ms},0] op_sel_hi:[1,{ms},1]")
            for k in range(8):
                st = k >> 1; rs = (RL + st) & 1
                p(f"v_pk_fma_f32 {vr(prs[k],2)}, {vr(prs[k],2)}, {vr((RL+st)&~1,2)}, {vr(tmp[k],2)} op_sel:[0,{rs},0] op_sel_hi:[1,{rs},1]")
            self.gelu(prs, tmp, vc1, sC2)
            for k in range(8): p(f"v_cvt_pk_bf16_f32 v{PK+8*x+k}, v{prs[k]}, v{prs[k]+1}")
            for st in range(4):
                p(f"ds_write_b64 v{vtmp2}, {vr(PK+8*x+2*st,2)} offset:{x*2048+st*512}")
        self.stamp(0)

    def lnfin2(self, S, Q, tmp, n, r_out, m_out):
        p = self.p
        p(f"v_mul_f32 v{S}, {-1.0/n:.10g}, v{S}")
        p(f"v_mul_f32 v{Q}, {1.0/n:.10g}, v{Q}")
        p(f"v_fma_f32 v{Q}, -v{S}, v{S}, v{Q}")
        p(f"v_max_f32 v{Q}, 0, v{Q}")
        p(f"v_add_f32 v{Q}, 1e-5, v{Q}")
        p(f"v_rsq_f32 v{r_out}, v{Q}")
        p(f"v_mul_f32 v{m_out}, v{S}, v{r_out}")


    def phase3(self):
        p = self.p; t = sT
        V = Alloc(2, PV_XRES, 'v')
        vtmp, vtmp2, vz, vl16 = V(), V(), V(), V()
        vn, vh, vl8, vbs = V(), V(), V(), V()
        acc = V(112, 4); RING = 3
        ZB = [V(28, 4) for _ in range(RING)]
        pv = V(2)
        self.srd(SA, P_BSP, 4096)
        p(f"v_lshlrev_b32 v{vtmp}, 1, v{vn}"); p(f"s_lshl_b32 s{t[0]}, s{sI}, 7"); p(f"s_lshl_b32 s{t[1]}, s{sWAVE}, 5"); p(f"s_add_u32 s{t[0]}, s{t[0]}, s{t[1]}")
        p(f"buffer_load_ushort v{vbs}, v{vtmp}, s[{SA}:{SA+3}], s{t[0]} offen")
        for k in range(112): p(f"v_mov_b32 v{acc+k}, 0")
        p(f"v_min_u32 v{vtmp}, 7, v1"); p(f"v_lshlrev_b32 v{vtmp}, 7, v{vtmp}")
        p(f"s_lshl_b32 s{t[0]}, s{sJ}, 12"); p(f"s_lshl_b32 s{t[1]}, s{sWAVE}, 10"); p(f"s_add_u32 s{t[0]}, s{t[0]}, s{t[1]}"); p(f"s_add_u32 s{t[0]}, s{t[0]}, {L.F4}")
        self.poll(vtmp, t[0], 1, 0, pv, sE, "s4")
        self.stamp(0)
        p(f"s_lshl_b32 s{t[0]}, s{sJ}, 6"); p(f"s_lshl_b32 s{t[1]}, s{sWAVE}, 4"); p(f"s_add_u32 s{t[0]}, s{t[0]}, s{t[1]}")
        p(f"s_mul_i32 s{t[0]}, s{t[0]}, 7168"); p(f"s_add_u32 s{t[0]}, s{t[0]}, {L.Z2N}"); p(f"s_add_u32 s{t[1]}, s{t[0]}, 4096")
        def zload(ks, ft):
            p(f"buffer_load_dwordx4 {vr(ZB[ks%RING]+4*ft,4)}, v{vl16}, s[{WS}:{WS+3}], s{t[ft>>2]} offen offset:{(ft&3)*1024} sc1")
            if ft == 6: p(f"s_add_u32 s{t[0]}, s{t[0]}, 7168"); p(f"s_add_u32 s{t[1]}, s{t[1]}, 7168")
        for ks in range(RING):
            for ft in range(7): zload(ks, ft)
        total = 16 * 7
        for ks in range(16):
            for ft in range(7):
                idx = ks * 7 + ft
                issued = min(total, idx + 7 * RING)
                p(f"s_waitcnt vmcnt({issued - idx - 1})")
                for x in range(4):
                    d = acc + 16 * ft + 4 * x
                    p(f"v_mfma_f32_16x16x32_bf16 {vr(d,4)}, {vr(ZB[ks%RING]+4*ft,4)}, {ar(16*ks+4*x,4)}, {vr(d,4)}")
                if ks + RING < 16: zload(ks + RING, ft)
        self.stamp(0)
        va = [V() for _ in range(3)]
        for x in range(1, 4):
            p(f"s_add_u32 s{t[0]}, s{sWAVE}, {x}"); p(f"s_and_b32 s{t[0]}, s{t[0]}, 3"); p(f"s_mul_i32 s{t[0]}, s{t[0]}, {21*1024}")
            p(f"s_add_u32 s{t[0]}, s{t[0]}, {(x-1)*7*1024}"); p(f"v_add_u32 v{va[x-1]}, s{t[0]}, v{vl16}")
        for ft in range(7):
            for x in range(1, 4):
                p(f"ds_write_b128 v{va[x-1]}, {vr(acc+16*ft+4*x,4)} offset:{ft*1024}")
        p("s_waitcnt lgkmcnt(0)"); p("s_barrier")
        p(f"s_mul_i32 s{t[0]}, s{sWAVE}, {21*1024}"); p(f"v_add_u32 v{vtmp}, s{t[0]}, v{vl16}")
        p(f"s_lshl_b32 s{t[0]}, s{sWAVE}, 9"); p(f"s_add_u32 s{t[0]}, s{t[0]}, {L_Z1}"); p(f"v_add_u32 v{vtmp2}, s{t[0]}, v{vl8}")
        Z1 = ZB[0]; ZU = ZB[1]; UP = ZB[2]
        p(f"v_lshlrev_b32 v{vbs}, 16, v{vbs}")
        p(f"s_lshl_b32 s{t[0]}, s{sI}, 2"); p(f"s_add_u32 s{t[0]}, s{t[0]}, s{sWAVE}"); p(f"s_mul_i32 s{t[0]}, s{t[0]}, {28*1024}"); p(f"s_add_u32 s{t[0]}, s{t[0]}, {L.U}")
        p(f"s_mul_i32 s{t[1]}, s{sJ}, 3072"); p(f"s_add_u32 s{t[1]}, s{t[1]}, s{t[0]}")
        p(f"s_lshr_b32 s{t[2]}, s{sJ}, 1"); p(f"s_lshl_b32 s{t[2]}, s{t[2]}, 10"); p(f"s_add_u32 s{t[2]}, s{t[2]}, s{t[0]}"); p(f"s_add_u32 s{t[2]}, s{t[2]}, {24*1024}")
        p(f"s_and_b32 s{t[3]}, s{sJ}, 1"); p(f"s_lshl_b32 s{t[3]}, s{t[3]}, 3"); p(f"s_add_u32 s{t[2]}, s{t[2]}, s{t[3]}")
        def rreads(ft):
            for x in range(1, 4): p(f"ds_read_b128 {vr(acc+16*ft+4*x,4)}, v{vtmp} offset:{((x-1)*7+ft)*1024}")
            p(f"ds_read_b64 {vr(Z1+2*ft,2)}, v{vtmp2} offset:{ft*2048}")
        rreads(0); rreads(1); rreads(2)
        bs = vbs & 1
        for ft in range(7):
            if ft + 3 < 7: rreads(ft + 3)
            p(f"s_waitcnt lgkmcnt({4*min(3, 6-ft)})")
            a = acc + 16 * ft
            for o in (0, 2): p(f"v_pk_add_f32 {vr(a+o,2)}, {vr(a+o,2)}, {vr(a+4+o,2)}")
            for o in (0, 2): p(f"v_pk_add_f32 {vr(a+8+o,2)}, {vr(a+8+o,2)}, {vr(a+12+o,2)}")
            self.unpack(ZU, ZU + 1, Z1 + 2 * ft); self.unpack(ZU + 2, ZU + 3, Z1 + 2 * ft + 1)
            for o in (0, 2): p(f"v_pk_add_f32 {vr(a+o,2)}, {vr(a+o,2)}, {vr(vbs&~1,2)} op_sel:[0,{bs}] op_sel_hi:[1,{bs}]")
            for o in (0, 2): p(f"v_pk_add_f32 {vr(a+o,2)}, {vr(a+o,2)}, {vr(a+8+o,2)}")
            for o in (0, 2): p(f"v_pk_mul_f32 {vr(a+o,2)}, {vr(a+o,2)}, {vr(ZU+o,2)}")
            p(f"v_cvt_pk_bf16_f32 v{UP+2*ft}, v{a}, v{a+1}"); p(f"v_cvt_pk_bf16_f32 v{UP+2*ft+1}, v{a+2}, v{a+3}")
            if ft in (1, 3, 5):
                p(f"buffer_store_dwordx4 {vr(UP+2*(ft-1),4)}, v{vl16}, s[{WS}:{WS+3}], s{t[1]} offen offset:{(ft>>1)*1024} sc1")
            if ft == 6:
                p(f"buffer_store_dwordx2 {vr(UP+12,2)}, v{vl16}, s[{WS}:{WS+3}], s{t[2]} offen sc1")
        p("s_waitcnt vmcnt(0)"); p("s_barrier")
        lab = p.newlabel("L_f5")
        p(f"s_cmp_eq_u32 s{sWAVE}, 0"); p(f"s_cbranch_scc0 {lab}")
        p(f"s_lshl_b32 s{t[0]}, s{sI}, 3"); p(f"s_add_u32 s{t[0]}, s{t[0]}, s{sJ}"); p(f"s_lshl_b32 s{t[0]}, s{t[0]}, 7"); p(f"s_add_u32 s{t[0]}, s{t[0]}, {L.F5}")
        p(f"v_mov_b32 v{vtmp}, s{sE}"); p("s_mov_b64 exec, 1")
        p(f"buffer_store_dword v{vtmp}, v{vz}, s[{WS}:{WS+3}], s{t[0]} offen sc1")
        p("s_mov_b64 exec, -1")
        p.label(lab)
        self.stamp(0)

    def phase4(self):
        p = self.p; t = sT
        V = Alloc(2, PV_XRES, 'v')
        vtmp, vtmp2, vz, vl16 = V(), V(), V(), V()
        vn, vh, vl8 = V(), V(), V()
        vd = V(); pv = V(2)
        UF = V(112, 4); acc = V(16, 4); GB = V(16, 4); FB = [V(16, 4), V(16, 4)]; vA = V(4)
        self.srd(SA, P_WOUT, 896 * 1024); self.srd(SC, P_OUT, 2097152)
        p(f"v_lshrrev_b32 v{vtmp}, 3, v1"); p(f"v_lshlrev_b32 v{vd}, 10, v{vtmp}")
        p(f"v_and_b32 v{vtmp}, 6, v{vtmp}"); p(f"v_and_b32 v{vtmp2}, 7, v1"); p(f"v_xor_b32 v{vtmp}, v{vtmp}, v{vtmp2}"); p(f"v_lshl_add_u32 v{vd}, v{vtmp}, 4, v{vd}")
        p(f"s_lshl_b32 s{t[0]}, s{sWAVE}, 13"); p(f"s_lshl_b32 s{t[1]}, s{sJ}, 7"); p(f"s_add_u32 s{t[0]}, s{t[0]}, s{t[1]}")
        p(f"s_cmp_ge_u32 s{sWAVE}, 2"); p(f"s_cselect_b32 s{t[1]}, {96*1024}, 0"); p(f"s_add_u32 s{t[1]}, s{t[1]}, s{t[0]}"); p(f"s_add_u32 s{t[1]}, s{t[1]}, {96*1024}")
        p(f"s_lshl_b32 s{t[2]}, s{sWAVE}, 10")
        for ks in range(28):
            if ks < 24: p(f"s_add_u32 s{t[3]}, s{t[0]}, {(112*(ks//3) + 32*(ks%3))*1024}")
            else: p(f"s_add_u32 s{t[3]}, s{t[1]}, {224*(ks-24)*1024}")
            p(f"s_add_u32 m0, s{t[2]}, {ks*4096}")
            p(f"buffer_load_dwordx4 v{vd}, s[{SA}:{SA+3}], s{t[3]} offen lds")
        p(f"v_lshlrev_b32 v{vtmp}, 4, v{vh}"); p(f"s_lshl_b32 s{t[0]}, s{sJ}, 8"); p(f"s_add_u32 s{t[0]}, s{t[0]}, {L.MOD + 5*2048}")
        for dt in range(4):
            p(f"buffer_load_dwordx4 {vr(GB+4*dt,4)}, v{vtmp}, s[{WS}:{WS+3}], s{t[0]} offen offset:{64*dt} sc1")
        for k in range(16): p(f"v_mov_b32 v{acc+k}, 0")
        p(f"v_lshrrev_b32 v{vtmp}, 2, v1"); p(f"v_lshlrev_b32 v{vtmp}, 7, v{vtmp}")
        p(f"v_bfe_u32 v{vtmp2}, v1, 1, 1"); p(f"v_lshl_add_u32 v{vtmp}, v{vtmp2}, 4, v{vtmp}")
        p(f"v_and_b32 v{vtmp2}, 1, v1"); p(f"v_lshl_add_u32 v{vtmp}, v{vtmp2}, 3, v{vtmp}")
        p(f"v_bfe_u32 v{vtmp2}, v1, 3, 2")
        for dt in range(4):
            p(f"v_xor_b32 v{vA+dt}, {dt}, v{vtmp2}"); p(f"v_lshl_add_u32 v{vA+dt}, v{vA+dt}, 5, v{vtmp}")
        p(f"v_min_u32 v{vtmp}, 7, v1"); p(f"v_lshlrev_b32 v{vtmp}, 7, v{vtmp}")
        p(f"s_lshl_b32 s{t[0]}, s{sI}, 10"); p(f"s_add_u32 s{t[0]}, s{t[0]}, {L.F5}")
        self.poll(vtmp, t[0], 1, 0, pv, sE, "s5")
        self.stamp(0)
        p(f"s_lshl_b32 s{t[0]}, s{sI}, 2"); p(f"s_add_u32 s{t[0]}, s{t[0]}, s{sWAVE}"); p(f"s_mul_i32 s{t[0]}, s{t[0]}, {28*1024}"); p(f"s_add_u32 s{t[0]}, s{t[0]}, {L.U}")
        for ks in range(28):
            p(f"buffer_load_dwordx4 {vr(UF+4*ks,4)}, v{vl16}, s[{WS}:{WS+3}], s{t[0]} offen offset:{(ks&3)*1024} sc1")
            if ks % 4 == 3 and ks < 27: p(f"s_add_u32 s{t[0]}, s{t[0]}, 4096")
        p("s_barrier")
        def areads(ks, buf):
            if ks == 16:
                for dt in range(4): p(f"v_add_u32 v{vA+dt}, 65536, v{vA+dt}")
            for dt in range(4):
                for q in range(2):
                    p(f"ds_read_b64_tr_b16 {vr(FB[buf]+4*dt+2*q,2)}, v{vA+dt} offset:{(ks&15)*4096 + q*2048}")
        areads(0, 0)
        for ks in range(28):
            buf = ks & 1
            if ks < 27: areads(ks + 1, buf ^ 1)
            p(f"s_waitcnt vmcnt({27-ks}) lgkmcnt({8 if ks < 27 else 0})")
            for dt in range(4):
                p(f"v_mfma_f32_16x16x32_bf16 {vr(acc+4*dt,4)}, {vr(FB[buf]+4*dt,4)}, {vr(UF+4*ks,4)}, {vr(acc+4*dt,4)}")
        self.stamp(0)
        X = FB[0]; O = FB[1]
        for dt in range(4):
            self.unpack(X + 4 * dt, X + 4 * dt + 1, PV_XRES + 2 * dt); self.unpack(X + 4 * dt + 2, X + 4 * dt + 3, PV_XRES + 2 * dt + 1)
        p(f"v_lshlrev_b32 v{vd}, 10, v{vn}"); p(f"v_and_b32 v{vtmp}, 1, v{vh}"); p(f"v_lshl_add_u32 v{vd}, v{vtmp}, 5, v{vd}")
        p(f"v_lshrrev_b32 v{vtmp}, 1, v{vh}"); p(f"v_lshl_add_u32 v{vd}, v{vtmp}, 4, v{vd}")
        p(f"s_lshl_b32 s{t[0]}, s{sI}, 16"); p(f"s_lshl_b32 s{t[1]}, s{sWAVE}, 14"); p(f"s_add_u32 s{t[0]}, s{t[0]}, s{t[1]}")
        p(f"s_lshl_b32 s{t[1]}, s{sJ}, 7"); p(f"s_add_u32 s{t[0]}, s{t[0]}, s{t[1]}")
        for k in range(8):
            p(f"v_pk_fma_f32 {vr(X+2*k,2)}, {vr(acc+2*k,2)}, {vr(GB+2*k,2)}, {vr(X+2*k,2)}")
        for k in range(8): p(f"v_cvt_pk_bf16_f32 v{O+k}, v{X+2*k}, v{X+2*k+1}")
        for pp in range(2):
            b = O + 4 * pp
            p(f"v_permlane16_swap_b32 v{b}, v{b+2}"); p(f"v_permlane16_swap_b32 v{b+1}, v{b+3}")
            p(f"buffer_store_dwordx4 {vr(b,4)}, v{vd}, s[{SC}:{SC+3}], s{t[0]} offen offset:{64*pp}")

    def finish(self):
        p = self.p
        lab = p.newlabel("L_ep")
        p("s_cmp_eq_u32 s2, 0"); p(f"s_cbranch_scc0 {lab}")
        p(f"s_cmp_eq_u32 s{sWAVE}, 0"); p(f"s_cbranch_scc0 {lab}")
        p(f"v_mov_b32 v2, s{sE}"); p("v_mov_b32 v3, 0"); p("s_mov_b64 exec, 1")
        p(f"buffer_store_dword v2, v3, s[{WS}:{WS+3}], 0 offen offset:{L.EPOCH} sc1")
        p("s_mov_b64 exec, -1")
        p.label(lab)
        self.stamp(2)
        self.flush_stamps()
        p.label("L_end"); p("s_endpgm")

    def build(self):
        self.prologue()
        self.phase0()
        if self.upto >= 1: self.phase1()
        if self.upto >= 2: self.phase2()
        if self.upto >= 3: self.phase3()
        if self.upto >= 4: self.phase4()
        self.finish()
        self.p.fix_hazards()
        hdr = open("adaLN_cond__ssm_conv_h3__mixer_gmlp__prompt.s.ref").read().split("; Override")[0]
        hdr += f"; @launch kernel={NAME} grid=(256,1,1) block=(256,1,1) lds={LDS_BYTES}\n.amdgcn_target \"amdgcn-amd-amdhsa--gfx950\"\n"
        return hdr + kernel_header(NAME) + self.p.text() + kernel_desc(NAME, 256, 96, 256)

if __name__ == "__main__":
    import argparse
    ap = argparse.ArgumentParser(); ap.add_argument("--upto", type=int, default=4); ap.add_argument("--prof", action="store_true")
    ap.add_argument("-o", default="f.s"); ap.add_argument("--xmap", default="8x4")
    a = ap.parse_args()
    open(a.o, "w").write(G(a.upto, a.prof, a.xmap).build())
```

```python
MB = 1 << 20
EPOCH = 0
C2   = 4096
F1   = 65536
F1B  = F1 + 65536
F4   = F1B + 65536
F5   = F4 + 32768
ST1  = 1 << 18
MODP = ST1 + 16384
ST3  = 1 << 19
PROF = 3 << 18
GAP = 65536
KVR  = 1 * MB
XT   = KVR + 2 * MB + GAP
X1T  = XT + 2 * MB + GAP
WIN  = X1T + 2 * MB + GAP
Z2N  = 9 * MB
ZSTR = 64 * 7168 + 1024
U    = 13 * MB
USTR = 112 * 1024 + 1024
WOUT = 17 * MB
WSP  = 18 * MB
WSTR = 262144 + 1024
WS_SIZE = 27 * MB
OOB = 0x40000000
assert WIN + 112 * 16384 <= Z2N and Z2N + 8 * ZSTR <= U and U + 32 * USTR <= WOUT and WSP + 32 * WSTR <= WS_SIZE
holes = [0xF8000, XT - GAP, X1T - GAP, WIN - GAP, Z2N - 1024, U - 1024, WOUT - 1024, WSP - 1024, WS_SIZE - 1024]
holes += [Z2N + j * ZSTR + 64 * 7168 for j in range(8)] + [U + i * USTR + 112 * 1024 for i in range(32)] + [WSP + i * WSTR + 262144 for i in range(32)]
def page_holes(pg=2 * MB):
    out = []
    for k in range((WS_SIZE + pg - 1) // pg):
        c = [h for h in holes if k * pg <= h < (k + 1) * pg]
        assert c, k
        out.append(c[0])
    return out
```

```python
import sys
from asm import *
import layout as L

NAME = "adaLN_cond__ssm_conv_h3__mixer_gmlp__prompt_kernel"
P_Q, P_K, P_V, P_SH, P_SSM, P_D, P_BX, P_WIN, P_WSP, P_BSP, P_WOUT, P_C, P_WMOD, P_OUT, P_DBG, P_WS = range(16)
def ptr(p): return 4 + 2 * p
WS = 36
SA, SB, SC, SD = 40, 44, 48, 52
sWAVE, sE, sI, sJ = 56, 57, 58, 59
sT = list(range(60, 80))
sSTAMP = 80
sX = 84
s4096 = 86
sD0 = 87
sU = list(range(88, 100))
SPIN_LIMIT = 200000
W = f"s[{WS}:{WS+3}]"

vTMP, vTMP2, vZ, vL16, vN, vH, vL8, vL4 = 2, 3, 4, 5, 6, 7, 8, 9
V0 = 10
PV_CS = 214
PV_XRES = 246
KC_STRIDE = 4384
KC = 0
KVL = 2 * 8 * KC_STRIDE
KVL_STRIDE = 6400
L_WST = 83968
L_TR = 100352
XA_FR = 1056
L_XA = 0
L_XRES = 64 * XA_FR
L_STP = 129024
L_ST2 = L_STP + 2048
L_ZP = L_ST2 + 2048
L_ST3 = L_ZP + 2048
L_CB = L_ST3 + 2048
L_AUG = L_CB + 2048
L_Z1 = L_AUG + 2048
L_GB = L_Z1 + 16384
LDS_BYTES = L_GB + 1024

def mfma(d, a, b): return f"v_mfma_f32_16x16x32_bf16 {vr(d,4)}, {a}, {b}, {vr(d,4)}"

class G:
    def __init__(self, prof=False, xmap='8x4', opt=None):
        self.p = Prog(); self.prof = prof; self.xmap = xmap
        self.nstamp = 0
        self.vmq = []; self.dsq = []
        self.o = dict(pd=4, pre_arrive=0)
        self.o.update(opt or {})

    def vm(self, text, tag=None): self.p(text); self.vmq.append(tag)
    def ds(self, text, tag=None): self.p(text); self.dsq.append(tag)
    def _cnt(self, q, tags):
        if not isinstance(tags, (list, tuple, set)) or isinstance(tags, tuple): tags = [tags]
        last = -1
        for k, x in enumerate(q):
            if x in tags: last = k
        return None if last < 0 else len(q) - 1 - last
    def wait(self, vm=None, ds=None):
        parts = []
        if vm is not None:
            n = 0 if vm == 'all' else self._cnt(self.vmq, vm)
            if n is not None:
                parts.append(f"vmcnt({min(n,63)})"); n = min(n, 63); self.vmq = self.vmq[len(self.vmq) - n:] if n else []
        if ds is not None:
            n = 0 if ds == 'all' else self._cnt(self.dsq, ds)
            if n is not None:
                parts.append(f"lgkmcnt({min(n,15)})"); n = min(n, 15); self.dsq = self.dsq[len(self.dsq) - n:] if n else []
        if parts: self.p("s_waitcnt " + " ".join(parts))
    def barrier(self): self.wait(ds='all'); self.p("s_barrier")

    def srd(self, s, p_idx, size):
        p = self.p
        p(f"s_mov_b32 s{s}, s{ptr(p_idx)}"); p(f"s_mov_b32 s{s+1}, s{ptr(p_idx)+1}")
        p(f"s_mov_b32 s{s+2}, {size}"); p(f"s_mov_b32 s{s+3}, 0x20000")

    def stamp(self, name=""):
        if not self.prof: return
        p = self.p; n = self.nstamp; self.nstamp += 1
        lab = p.newlabel("L_ns")
        p(f"s_memrealtime s[{sSTAMP}:{sSTAMP+1}]"); p("s_waitcnt lgkmcnt(0)")
        p(f"v_writelane_b32 v255, s{sSTAMP}, {n}")

    def flush_stamps(self):
        if not self.prof: return
        p = self.p
        lab = p.newlabel("L_fs")
        p(f"s_lshl_b32 s{sT[0]}, s2, 10"); p(f"s_lshl_b32 s{sT[1]}, s{sWAVE}, 8"); p(f"s_add_u32 s{sT[0]}, s{sT[0]}, s{sT[1]}"); p(f"s_add_u32 s{sT[0]}, s{sT[0]}, {L.PROF}")
        p(f"buffer_store_dword v255, v{vL4}, {W}, s{sT[0]} offen")

    def lane0_store(self, val_s, soff, atomic=False):
        p = self.p
        p(f"v_mov_b32 v{vTMP}, " + ("1" if atomic else f"s{val_s}")); p("s_mov_b64 exec, 1")
        p(f"{'buffer_atomic_add' if atomic else 'buffer_store_dword'} v{vTMP}, v{vZ}, {W}, s{soff} offen sc1")
        p("s_mov_b64 exec, -1")

    def poll(self, loads, check_regs, target_s, tag, first_issued=None):
        p = self.p
        lp = p.newlabel("L_poll" + tag); chk = p.newlabel("L_pc" + tag); done = p.newlabel("L_pd" + tag)
        p(f"s_mov_b32 s{sT[18]}, 0")
        if first_issued is not None:
            self.wait(vm=first_issued); p(f"s_branch {chk}")
        p.label(lp)
        for x in loads: p(x)
        p("s_waitcnt vmcnt(0)")
        p.label(chk)
        p(f"v_xor_b32 v{vTMP}, s{target_s}, v{check_regs[0]}")
        for r in check_regs[1:]:
            p(f"v_xor_b32 v{vTMP2}, s{target_s}, v{r}"); p(f"v_or_b32 v{vTMP}, v{vTMP}, v{vTMP2}")
        p(f"v_cmp_ne_u32 vcc, 0, v{vTMP}")
        p(f"s_cbranch_vccz {done}")
        p(f"s_add_u32 s{sT[18]}, s{sT[18]}, 1"); p(f"s_cmp_gt_u32 s{sT[18]}, {SPIN_LIMIT}"); p(f"s_cbranch_scc1 {done}")
        p("s_sleep 1")
        p(f"s_branch {lp}")
        p.label(done)
        if first_issued is None: self.vmq = []

    def allreduce(self, regs, tmp):
        p = self.p
        for mod in ("quad_perm:[1,0,3,2]", "quad_perm:[2,3,0,1]", "row_half_mirror", "row_mirror"):
            for r in regs: p(f"v_add_f32_dpp v{r}, v{r}, v{r} {mod} row_mask:0xf bank_mask:0xf")
        for sw in ("v_permlane16_swap_b32", "v_permlane32_swap_b32"):
            for r, t in zip(regs, tmp): p(f"v_mov_b32 v{t}, v{r}")
            for r, t in zip(regs, tmp): p(f"{sw} v{r}, v{t}")
            for r, t in zip(regs, tmp): p(f"v_add_f32 v{r}, v{r}, v{t}")

    def unpack(self, lo, hi, src):
        self.p(f"v_lshlrev_b32 v{lo}, 16, v{src}"); self.p(f"v_and_b32 v{hi}, 0xffff0000, v{src}")

    def rnd(self, r):
        self.p(f"v_cvt_pk_bf16_f32 v{r}, v{r}, v{r}"); self.p(f"v_lshlrev_b32 v{r}, 16, v{r}")

    def mix(self, main, bg, every=1, start=0):
        bi = 0
        for k, m in enumerate(main):
            m()
            if k >= start and (k - start) % every == every - 1 and bi < len(bg):
                bg[bi](); bi += 1
        while bi < len(bg): bg[bi](); bi += 1

    def prologue(self):
        p = self.p; t = sT
        p.label("L_start")
        p("s_cmp_ge_u32 s2, 256"); p("s_cbranch_scc1 L_end")
        p("s_load_dwordx16 s[4:19], s[0:1], 0"); p("s_load_dwordx16 s[20:35], s[0:1], 64")
        p("v_and_b32 v1, 63, v0"); p(f"v_lshrrev_b32 v{vTMP}, 6, v0"); p(f"v_readfirstlane_b32 s{sWAVE}, v{vTMP}")
        if self.prof: p("v_mov_b32 v255, 0")
        p(f"v_mov_b32 v{vZ}, 0"); p(f"v_lshlrev_b32 v{vL16}, 4, v1"); p(f"v_and_b32 v{vN}, 15, v1"); p(f"v_lshrrev_b32 v{vH}, 4, v1")
        p(f"s_mov_b32 s{s4096}, 4096")
        p(f"s_lshr_b32 s{t[0]}, s2, 3"); p(f"s_lshl_b32 s{t[0]}, s{t[0]}, 16")
        p(f"s_and_b32 s{t[1]}, s2, 7"); p(f"s_lshl_b32 s{t[2]}, s{t[1]}, 7"); p(f"s_add_u32 s{t[0]}, s{t[0]}, s{t[2]}")
        p(f"s_and_b32 s{t[2]}, s{sWAVE}, 1"); p(f"s_lshl_b32 s{t[2]}, s{t[2]}, 6"); p(f"s_add_u32 s{t[0]}, s{t[0]}, s{t[2]}")
        self.vb = V0
        p(f"v_lshrrev_b32 v{vTMP}, 3, v1"); p(f"v_and_b32 v{vTMP2}, 7, v1")
        p(f"v_lshlrev_b32 v{V0}, 13, v{vTMP}"); p(f"v_lshl_add_u32 v{V0}, v{vTMP2}, 3, v{V0}"); p(f"v_add_u32 v{V0}, s{t[0]}, v{V0}")

    def common_scalars(self):
        p = self.p; t = sT
        p(f"v_lshlrev_b32 v{vL8}, 3, v1"); p(f"v_lshlrev_b32 v{vL4}, 2, v1")
        p(f"s_and_b32 s{t[0]}, s2, 7"); p(f"s_lshr_b32 s{t[1]}, s2, 3")
        if self.xmap == '8x4':
            p(f"s_lshr_b32 s{t[2]}, s{t[0]}, 1"); p(f"s_lshl_b32 s{t[2]}, s{t[2]}, 3"); p(f"s_and_b32 s{t[3]}, s{t[1]}, 7"); p(f"s_add_u32 s{sI}, s{t[2]}, s{t[3]}")
            p(f"s_and_b32 s{t[2]}, s{t[0]}, 1"); p(f"s_lshl_b32 s{t[2]}, s{t[2]}, 2"); p(f"s_lshr_b32 s{t[3]}, s{t[1]}, 3"); p(f"s_add_u32 s{sJ}, s{t[2]}, s{t[3]}")
        else:
            p(f"s_lshl_b32 s{t[2]}, s{t[0]}, 2"); p(f"s_and_b32 s{t[3]}, s{t[1]}, 3"); p(f"s_add_u32 s{sI}, s{t[2]}, s{t[3]}")
            p(f"s_lshr_b32 s{sJ}, s{t[1]}, 2")
        p(f"s_lshl_b32 s{sD0}, s{t[0]}, 6"); p(f"s_lshl_b32 s{t[1]}, s{t[1]}, 1"); p(f"s_add_u32 s{sD0}, s{sD0}, s{t[1]}")
        self.srd(WS, P_WS, L.WS_SIZE)
        p(f"s_load_dword s{sE}, s[{ptr(P_WS)}:{ptr(P_WS)+1}], {L.EPOCH}")

    def pretouch(self, v):
        p = self.p
        hs = L.page_holes()
        p(f"v_mov_b32 v{v}, {hs[0]}")
        for k, h in enumerate(hs[1:], 1):
            p(f"s_mov_b32 s{sT[17]}, {h}"); p(f"v_writelane_b32 v{v}, s{sT[17]}, {k}")
        self.vm(f"buffer_load_dword v{v}, v{v}, {W}, 0 offen sc1", 'pt')

    def epoch(self):
        self.p("s_waitcnt lgkmcnt(0)"); self.dsq = []
        self.p(f"s_mul_i32 s{sE}, s{sE}, 0x9E3779B1"); self.p(f"s_add_u32 s{sE}, s{sE}, 0x7F4A7C15")

    def j6_loads(self):
        p = self.p; t = sT
        self.srd(SB, P_WSP, 2048 * 4096)
        p(f"v_lshlrev_b32 v{vTMP}, 12, v{vN}"); p(f"v_lshl_add_u32 v{vTMP}, v{vH}, 4, v{vTMP}")
        p(f"s_lshr_b32 s{t[2]}, s2, 1"); p(f"s_lshl_b32 s{t[5]}, s{t[2]}, 16"); p(f"s_and_b32 s{t[3]}, s2, 1"); p(f"s_lshl_b32 s{t[4]}, s{t[3]}, 11"); p(f"s_add_u32 s{t[5]}, s{t[5]}, s{t[4]}")
        p(f"s_lshl_b32 s{t[4]}, s{sWAVE}, 9"); p(f"s_add_u32 s{t[5]}, s{t[5]}, s{t[4]}")
        for n in range(8): self.vm(f"buffer_load_dwordx4 {ar(4*n,4)}, v{vTMP}, s[{SB}:{SB+3}], s{t[5]} offen offset:{64*n}", 'j6')

    def phase0(self):
        p = self.p; t = sT; vb = self.vb
        xrole = p.newlabel("L_xrole"); self.join = p.newlabel("L_p0join")
        def ld2(dst, vaddr, srd, n, tag):
            so = "0" if n < 4 else f"s{s4096}"
            self.vm(f"buffer_load_dwordx2 {vr(dst,2)}, v{vaddr}, s[{srd}:{srd+3}], {so} offen offset:{(n%4)*1024}", tag)
        def tstore_addr(V, base, rev):
            vw_, vg_ = V(), V(); vr_ = V(4)
            p(f"s_lshl_b32 s{t[13]}, s{sWAVE}, 12"); p(f"s_add_u32 s{t[13]}, s{t[13]}, {L_TR}")
            p(f"v_lshrrev_b32 v{vTMP}, 3, v1"); p(f"v_and_b32 v{vTMP2}, 7, v1")
            p(f"v_lshlrev_b32 v{vg_}, 12, v{vTMP}"); p(f"v_lshl_add_u32 v{vg_}, v{vTMP2}, 4, v{vg_}")
            p(f"v_lshrrev_b32 v{vr_}, 5, v1"); p(f"v_xor_b32 v{vr_}, v{vr_}, v{vTMP2}"); p(f"v_lshlrev_b32 v{vr_}, 4, v{vr_}"); p(f"v_lshl_add_u32 v{vr_}, v{vTMP}, 7, v{vr_}")
            p(f"v_add_u32 v{vr_}, s{t[13]}, v{vr_}")
            for q in range(1, 4): p(f"v_xor_b32 v{vr_+q}, {32*q}, v{vr_}")
            if rev: p(f"v_xor_b32 v{vTMP}, 7, v{vTMP}")
            p(f"v_xor_b32 v{vTMP}, v{vTMP}, v{vTMP2}"); p(f"v_lshlrev_b32 v{vw_}, 9, v{vTMP2}"); p(f"v_lshl_add_u32 v{vw_}, v{vTMP}, 4, v{vw_}")
            p(f"v_add_u32 v{vw_}, s{t[13]}, v{vw_}")
            p(f"s_and_b32 s{t[14]}, s2, 7"); p(f"s_lshl_b32 s{t[14]}, s{t[14]}, 18")
            p(f"s_and_b32 s{t[16]}, s{sWAVE}, 1"); p(f"s_lshl_b32 s{t[16]}, s{t[16]}, 17"); p(f"s_add_u32 s{t[14]}, s{t[14]}, s{t[16]}")
            p(f"s_lshr_b32 s{t[15]}, s2, 3"); p(f"s_lshl_b32 s{t[15]}, s{t[15]}, 7")
            if rev: p(f"s_sub_u32 s{t[14]}, s{t[14]}, s{t[15]}"); p(f"s_add_u32 s{t[14]}, s{t[14]}, {base + 4096 - 128}")
            else: p(f"s_add_u32 s{t[14]}, s{t[14]}, s{t[15]}"); p(f"s_add_u32 s{t[14]}, s{t[14]}, {base}")
            for c in range(1, 4): p(f"s_add_u32 s{t[14+c]}, s{t[14]}, {32768*c}")
            return vw_, vr_, vg_
        def tstore(o, vr_, vg_, tag):
            self.wait(ds='all')
            for q in range(4): self.ds(f"ds_read_b128 {vr(o+4*q,4)}, v{vr_+q} offset:{1024*q}", ('t', q))
            for q in range(4):
                self.wait(ds=('t', q))
                self.vm(f"buffer_store_dwordx4 {vr(o+4*q,4)}, v{vg_}, {W}, s{t[14+q]} offen sc1", tag)
        p(f"s_cmp_ge_u32 s{sWAVE}, 2"); p(f"s_cbranch_scc1 {xrole}")
        V = Alloc(V0 + 1, 250, 'v')
        va = V()
        p(f"v_subrev_u32 v{va}, 3072, v{vb}")
        p(f"v_cmp_gt_u32 vcc, 1024, v{vb}"); p(f"v_mov_b32 v{vTMP}, {L.OOB}"); p(f"v_cndmask_b32 v{va}, v{va}, v{vTMP}, vcc")
        p(f"v_lshlrev_b32 v{vTMP2}, 5, v{vTMP2}"); p(f"s_and_b32 s{t[2]}, s2, 7"); p(f"s_lshl_b32 s{t[2]}, s{t[2]}, 9")
        p(f"s_lshl_b32 s{t[3]}, s{sWAVE}, 8"); p(f"s_add_u32 s{t[2]}, s{t[2]}, s{t[3]}")
        rk = V(22, 2); rv = V(16, 2); rsh = V(8, 2); D = V(32, 2); vs0 = V()
        p(f"v_subrev_u32 v{vs0}, 16, v{vL16}"); p(f"v_cmp_eq_u32 vcc, 0, v1"); p(f"v_cndmask_b32 v{vs0}, v{vs0}, v{vTMP}, vcc")
        p("s_waitcnt lgkmcnt(0)")
        self.srd(SA, P_K, 2097152)
        for n in range(8): ld2(rk + 6 + 2 * n, vb, SA, n, 'kv')
        self.srd(SB, P_V, 2097152)
        for n in range(8): ld2(rv + 2 * n, vb, SB, n, 'kv')
        for n in range(3): ld2(rk + 2 * n, va, SA, n, 'kv')
        self.srd(SD, P_SH, 4096)
        for q in range(2): self.vm(f"buffer_load_dwordx4 {vr(rsh+4*q,4)}, v{vTMP2}, s[{SD}:{SD+3}], s{t[2]} offen offset:{16*q}", 'kv')
        self.common_scalars()
        self.srd(SC, P_SSM, 2097152)
        p(f"s_add_u32 s{t[12]}, s{sD0}, s{sWAVE}"); p(f"s_lshl_b32 s{t[12]}, s{t[12]}, 12")
        for m in range(4):
            if m == 0: self.vm(f"buffer_load_dwordx4 {vr(D,4)}, v{vs0}, s[{SC}:{SC+3}], s{t[12]} offen", 'ssm')
            else: self.vm(f"buffer_load_dwordx4 {vr(D+8*m,4)}, v{vL16}, s[{SC}:{SC+3}], s{t[12]} offen offset:{1024*m-16}", 'ssm')
            self.vm(f"buffer_load_dwordx4 {vr(D+8*m+4,4)}, v{vL16}, s[{SC}:{SC+3}], s{t[12]} offen offset:{1024*m}", 'ssm')
        if self.o.get('pt', 1): self.pretouch(V())
        self.stamp("start")
        vtw, vtr, vtg = tstore_addr(V, L.KVR, True)
        Kp = V(22, 2); Vp = V(16, 2); Wt = V(8, 2); acc = V(16, 2); o = V(16, 2)
        self.wait(vm='kv')
        self.stamp("kv landed")
        for g in range(2):
            for n in range(11): self.unpack(Kp + 2 * n, Kp + 2 * n + 1, rk + 2 * n + g)
            for n in range(8): self.unpack(Vp + 2 * n, Vp + 2 * n + 1, rv + 2 * n + g)
            sh = rsh + 4 * g
            self.unpack(Wt + 0, Wt + 2, sh + 0); self.unpack(Wt + 4, Wt + 6, sh + 1)
            self.unpack(Wt + 1, Wt + 3, sh + 2); self.unpack(Wt + 5, Wt + 7, sh + 3)
            for s in range(8): p(f"v_pk_mul_f32 {vr(acc+2*s,2)}, {vr(Kp+2*s,2)}, {vr(Wt+6,2)}")
            for j in (2, 1, 0):
                for s in range(8): p(f"v_pk_fma_f32 {vr(acc+2*s,2)}, {vr(Kp+2*(s+3-j),2)}, {vr(Wt+2*j,2)}, {vr(acc+2*s,2)}")
            for s in range(8): p(f"v_pk_mul_f32 {vr(acc+2*s,2)}, {vr(acc+2*s,2)}, {vr(Vp+2*s,2)}")
            for ch in range(2):
                for q in range(4): p(f"v_cvt_pk_bf16_f32 v{o+8*g+4*ch+q}, v{acc+2*(7-2*q)+ch}, v{acc+2*(6-2*q)+ch}")
                self.ds(f"ds_write_b128 v{vtw}, {vr(o+8*g+4*ch,4)} offset:{128*(2*g+ch)}")
        tstore(o, vtr, vtg, 'kvst')
        self.stamp("kv st issued")
        self.epoch()
        p(f"s_lshl_b32 s{t[3]}, s2, 8"); p(f"s_lshl_b32 s{t[4]}, s{sWAVE}, 7"); p(f"s_add_u32 s{t[3]}, s{t[3]}, s{t[4]}"); p(f"s_add_u32 s{t[3]}, s{t[3]}, {L.F1}")
        vc = V(); D1 = Kp; E = Kp + 8; E1 = Vp
        p(f"s_mul_i32 s{t[5]}, s{sWAVE}, {8*KC_STRIDE}"); p(f"s_add_u32 s{t[5]}, s{t[5]}, {KC + 48}"); p(f"v_add_u32 v{vc}, s{t[5]}, v{vL16}")
        self.wait(vm='ssm')
        for m in range(4):
            d = D + 8 * m; o2 = 8 * (m & 1) * 0
            for i in range(7): p(f"v_alignbit_b32 v{E+i}, v{d+i+1}, v{d+i}, 16")
            for i in range(6): p(f"v_alignbit_b32 v{E1+i}, v{d+i+2}, v{d+i+1}, 16")
            for i in range(6): p(f"v_mov_b32 v{D1+i}, v{d+i+1}")
            for j, r in enumerate((E, D1, E1, d + 2, E + 2, D1 + 2, E1 + 2, d + 4)):
                self.ds(f"ds_write_b128 v{vc}, {vr(r,4)} offset:{j*KC_STRIDE + 1024*m}")
            if m == self.o.get('f1_after', 1):
                self.wait(vm='kvst'); self.lane0_store(sE, t[3]); self.stamp("F1 set")
        Z = acc
        for k in range(4): p(f"v_mov_b32 v{Z+k}, 0")
        p(f"v_lshrrev_b32 v{vTMP}, 2, v1"); p(f"v_and_b32 v{vTMP}, 7, v{vTMP}"); p(f"v_mul_u32_u24 v{vTMP}, {KC_STRIDE}, v{vTMP}")
        p(f"v_and_b32 v{vTMP2}, 3, v1"); p(f"v_min_u32 v{vTMP2}, 2, v{vTMP2}"); p(f"v_lshl_add_u32 v{vTMP}, v{vTMP2}, 4, v{vTMP}")
        p(f"s_sub_u32 s{t[5]}, s{t[5]}, 48"); p(f"v_add_u32 v{vTMP}, s{t[5]}, v{vTMP}")
        self.ds(f"ds_write_b128 v{vTMP}, {vr(Z,4)}")
        p(f"s_mul_i32 s{t[5]}, s{sWAVE}, {KVL_STRIDE}"); p(f"s_add_u32 s{t[5]}, s{t[5]}, {KVL}"); p(f"v_add_u32 v{vTMP2}, s{t[5]}, v{vL16}")
        self.ds(f"ds_write_b128 v{vTMP2}, {vr(Z,4)} offset:5120"); self.ds(f"ds_write_b128 v{vTMP2}, {vr(Z,4)} offset:{6400-1024}")
        vkw, vf, pv = V(), V(), V(); rkv = D
        p(f"v_lshrrev_b32 v{vkw}, 2, v1"); p(f"v_add_u32 v{vkw}, v{vkw}, v1"); p(f"v_lshlrev_b32 v{vkw}, 4, v{vkw}"); p(f"v_add_u32 v{vkw}, s{t[5]}, v{vkw}")
        p(f"v_lshrrev_b32 v{vf}, 1, v1"); p(f"v_lshlrev_b32 v{vf}, 11, v{vf}"); p(f"v_and_b32 v{vTMP}, 1, v1"); p(f"v_lshl_add_u32 v{vf}, v{vTMP}, 7, v{vf}")
        p(f"s_and_b32 s{t[0]}, s2, 7"); p(f"s_lshl_b32 s{t[0]}, s{t[0]}, 8"); p(f"s_add_u32 s{t[0]}, s{t[0]}, {L.F1}")
        p(f"s_add_u32 s{t[1]}, s{t[12]}, {L.KVR}")
        self.stamp("ssm copies")
        self.poll([f"buffer_load_dword v{pv}, v{vf}, {W}, s{t[0]} offen sc1"], [pv], sE, "s1")
        self.stamp("S1 passed")
        self.wait(ds='all')
        for m in range(4): self.vm(f"buffer_load_dwordx4 {vr(rkv+4*m,4)}, v{vL16}, {W}, s{t[1]} offen offset:{1024*m} sc1", ('kvr', m))
        self.j6_loads()
        for m in range(4):
            self.wait(vm=('kvr', m)); self.ds(f"ds_write_b128 v{vkw}, {vr(rkv+4*m,4)} offset:{1280*m}")
        p("s_mov_b64 vcc, 0")
        p(f"s_branch {self.join}")
        p.label(xrole)
        self.vmq = []; self.dsq = []
        V = Alloc(V0 + 1, 250, 'v')
        sw = sU[0]
        p(f"s_and_b32 s{sw}, s{sWAVE}, 1")
        p(f"s_getpc_b64 s[{sX}:{sX+1}]")
        p.label("L_pc")
        p.raw(f"    s_sub_u32 s{sX}, s{sX}, L_pc-L_start\n    s_subb_u32 s{sX+1}, s{sX+1}, 0")
        p(f"s_lshr_b32 s{t[2]}, s2, 3"); p(f"s_and_b32 s{t[2]}, s{t[2]}, 3"); p(f"s_lshl_b32 s{t[2]}, s{t[2]}, 1"); p(f"s_add_u32 s{t[2]}, s{t[2]}, s{sw}"); p(f"s_lshl_b32 s{t[2]}, s{t[2]}, 13")
        vpf = V()
        p(f"v_lshlrev_b32 v{vpf}, 7, v1"); p(f"v_add_u32 v{vpf}, s{t[2]}, v{vpf}")
        p.raw(f"    v_min_u32 v{vpf}, L_end-L_start, v{vpf}")
        self.vm(f"global_load_dword v{vpf}, v{vpf}, s[{sX}:{sX+1}]", 'pf')
        rx = V(16, 2); rst = V(16, 2); rm = V(32, 2); rc = V(4, 2); vw, vm_, vo, vcq = V(), V(), V(), V()
        p("s_waitcnt lgkmcnt(0)")
        self.srd(SC, P_Q, 2097152)
        for n in range(8): ld2(rx + 2 * n, vb, SC, n, 'x')
        p(f"s_lshl_b32 s{t[3]}, s2, 13"); p(f"s_lshl_b32 s{t[4]}, s{sw}, 12"); p(f"s_add_u32 s{t[3]}, s{t[3]}, s{t[4]}")
        for r in range(4): self.vm(f"buffer_load_dwordx4 {vr(rst+4*r,4)}, v{vL16}, s[{SC}:{SC+3}], s{t[3]} offen offset:{1024*r}", 'st')
        self.common_scalars()
        p(f"v_lshrrev_b32 v{vw}, 1, v1"); p(f"v_lshlrev_b32 v{vo}, 10, v{vw}"); p(f"v_mul_u32_u24 v{vw}, 3584, v{vw}")
        p(f"v_and_b32 v{vTMP}, 1, v1"); p(f"v_lshl_add_u32 v{vw}, v{vTMP}, 4, v{vw}"); p(f"v_lshl_add_u32 v{vo}, v{vTMP}, 4, v{vo}")
        self.srd(SD, P_WIN, 512 * 3584)
        sKS, sT0, sLB, sCG, sKQ, sWI, sWO, sMD = sU[1:9]
        p(f"s_and_b32 s{sKS}, s2, 15"); p(f"s_lshr_b32 s{t[6]}, s2, 4")
        p(f"s_mul_i32 s{sT0}, s{t[6]}, 7"); p(f"s_lshl_b32 s{t[8]}, s{sw}, 2"); p(f"s_add_u32 s{sT0}, s{sT0}, s{t[8]}")
        p(f"s_mul_i32 s{sWI}, s{sKS}, {32*3584}"); p(f"s_lshl_b32 s{t[10]}, s{sT0}, 5"); p(f"s_add_u32 s{sWI}, s{sWI}, s{t[10]}")
        p(f"s_mul_i32 s{sLB}, s{sw}, 6144"); p(f"s_add_u32 s{sLB}, s{sLB}, {L_WST}")
        p(f"s_lshr_b32 s{t[6]}, s2, 3"); p(f"s_mul_i32 s{t[7]}, s{t[6]}, 21846"); p(f"s_lshr_b32 s{t[7]}, s{t[7]}, 16")
        p(f"s_lshl_b32 s{t[8]}, s{t[6]}, 5"); p(f"s_lshl_b32 s{t[7]}, s{t[7]}, 4"); p(f"s_add_u32 s{t[7]}, s{t[7]}, s{t[8]}")
        p(f"s_sub_u32 s{t[8]}, s{t[6]}, 24"); p(f"s_mul_i32 s{t[8]}, s{t[8]}, 224"); p(f"s_add_u32 s{t[8]}, s{t[8]}, 96")
        p(f"s_cmp_ge_u32 s{t[6]}, 24"); p(f"s_cselect_b32 s{t[7]}, s{t[8]}, s{t[7]}"); p(f"s_cselect_b32 s{t[8]}, {96*1024}, 0")
        p(f"v_cmp_lt_u32 vcc, 31, v1"); p(f"v_mov_b32 v{vTMP}, s{t[8]}"); p(f"v_cndmask_b32 v{vTMP}, 0, v{vTMP}, vcc"); p(f"v_add_u32 v{vo}, v{vo}, v{vTMP}")
        p(f"s_lshl_b32 s{sWO}, s{t[7]}, 10"); p(f"s_and_b32 s{t[8]}, s2, 7"); p(f"s_lshl_b32 s{t[8]}, s{t[8]}, 7"); p(f"s_add_u32 s{sWO}, s{sWO}, s{t[8]}")
        p(f"s_lshl_b32 s{t[8]}, s{sw}, 6"); p(f"s_add_u32 s{sWO}, s{sWO}, s{t[8]}")
        p(f"s_cmp_ge_u32 s2, 224"); p(f"s_cselect_b32 s{sWO}, {L.OOB}, s{sWO}")
        p(f"s_lshl_b32 s{t[6]}, s2, 1"); p(f"s_add_u32 s{t[6]}, s{t[6]}, s{sw}"); p(f"s_lshr_b32 s{sCG}, s{t[6]}, 3"); p(f"s_and_b32 s{sKQ}, s{t[6]}, 7")
        p(f"v_lshrrev_b32 v{vTMP}, 3, v1"); p(f"v_lshlrev_b32 v{vcq}, 4, v{vTMP}")
        p(f"v_mul_u32_u24 v{vm_}, {8*6144}, v{vTMP}"); p(f"v_and_b32 v{vTMP}, 7, v1"); p(f"v_lshl_add_u32 v{vm_}, v{vTMP}, 4, v{vm_}")
        p(f"s_mul_i32 s{sMD}, s{sKQ}, {64*6144}"); p(f"s_lshl_b32 s{t[7]}, s{sCG}, 7"); p(f"s_add_u32 s{sMD}, s{sMD}, s{t[7]}")
        p(f"s_cmp_ge_u32 s2, 192"); p(f"s_cselect_b32 s{sMD}, {L.OOB}, s{sMD}")
        vtw, vtr, vtg = tstore_addr(V, L.XT, False)
        o = V(16, 2)
        p(f"s_mov_b32 s{t[18]}, 0x05040100"); p(f"s_mov_b32 s{t[19]}, 0x07060302")
        self.stamp("x: issued")
        self.wait(vm='x')
        self.stamp("x: x landed")
        for c in range(4):
            for q in range(4): p(f"v_perm_b32 v{o+4*c+q}, v{rx+4*q+2+(c>>1)}, v{rx+4*q+(c>>1)}, s{t[18+(c&1)]}")
            self.ds(f"ds_write_b128 v{vtw}, {vr(o+4*c,4)} offset:{128*c}")
        tstore(o, vtr, vtg, None)
        self.wait(vm='st')
        for x in range(4):
            p(f"s_add_u32 s{t[10]}, s{sWI}, {32*x}")
            if x == 3: p(f"s_cmp_eq_u32 s{sw}, 1"); p(f"s_cselect_b32 s{t[10]}, {L.OOB}, s{t[10]}")
            p(f"s_add_u32 m0, s{sLB}, {1024*x}"); self.vm(f"buffer_load_dwordx4 v{vw}, s[{SD}:{SD+3}], s{t[10]} offen lds", 'dma')
        self.srd(SA, P_WOUT, 896 * 1024)
        for x in range(2):
            p(f"s_add_u32 s{t[10]}, s{sWO}, {32*x}")
            p(f"s_add_u32 m0, s{sLB}, {4096 + 1024*x}"); self.vm(f"buffer_load_dwordx4 v{vo}, s[{SA}:{SA+3}], s{t[10]} offen lds", 'dma')
        self.srd(SA, P_WMOD, 512 * 6144); self.srd(SB, P_C, 1024)
        p(f"s_lshl_b32 s{t[6]}, s{sKQ}, 7")
        self.vm(f"buffer_load_dwordx4 {vr(rc,4)}, v{vcq}, s[{SB}:{SB+3}], s{t[6]} offen", 'c')
        for n in range(8):
            self.vm(f"buffer_load_dwordx4 {vr(rm+4*n,4)}, v{vm_}, s[{SA}:{SA+3}], s{sMD} offen", ('m', n))
            if n < 7: p(f"s_add_u32 s{sMD}, s{sMD}, 6144")
        self.stamp("x: b2 issued")
        X = V(32, 2); S = V(8, 2); Q = V(8, 2); T4 = V(4, 2); R = V(8, 2)
        for r in range(4):
            for q in range(4): self.unpack(X + 8 * r + 2 * q, X + 8 * r + 2 * q + 1, rst + 4 * r + q)
        for q in range(1, 4):
            for r in range(4):
                p(f"v_pk_add_f32 {vr(S+2*r,2)}, {vr(X+8*r if q == 1 else S+2*r,2)}, {vr(X+8*r+2*q,2)}")
        for r in range(4): p(f"v_add_f32 v{S+2*r}, v{S+2*r}, v{S+2*r+1}")
        self.allreduce([S + 2 * r for r in range(4)], [T4 + r for r in range(4)])
        for r in range(4): p(f"v_mul_f32 v{S+2*r}, {-1.0/512:.10g}, v{S+2*r}")
        for r in range(4):
            for q in range(4): p(f"v_pk_add_f32 {vr(X+8*r+2*q,2)}, {vr(X+8*r+2*q,2)}, {vr(S+2*r,2)} op_sel_hi:[1,0]")
        for q in range(4):
            for r in range(4):
                if q == 0: p(f"v_pk_mul_f32 {vr(Q+2*r,2)}, {vr(X+8*r,2)}, {vr(X+8*r,2)}")
                else: p(f"v_pk_fma_f32 {vr(Q+2*r,2)}, {vr(X+8*r+2*q,2)}, {vr(X+8*r+2*q,2)}, {vr(Q+2*r,2)}")
        for r in range(4): p(f"v_add_f32 v{Q+2*r}, v{Q+2*r}, v{Q+2*r+1}")
        self.allreduce([Q + 2 * r for r in range(4)], [T4 + r for r in range(4)])
        p(f"v_mov_b32 v{T4}, 1e-5"); p(f"v_mov_b32 v{T4+1}, {1.0/512:.10g}")
        for r in range(4): p(f"v_fma_f32 v{Q+2*r}, v{Q+2*r}, v{T4+1}, v{T4}")
        for r in range(4): p(f"v_rsq_f32 v{R+r}, v{Q+2*r}")
        for r in range(4): p(f"v_mul_f32 v{R+4+r}, v{S+2*r}, v{R+r}")
        p(f"s_lshl_b32 s{t[3]}, s2, 5"); p(f"s_lshl_b32 s{t[4]}, s{sw}, 4"); p(f"s_add_u32 s{t[3]}, s{t[3]}, s{t[4]}"); p(f"s_add_u32 s{t[3]}, s{t[3]}, {L.ST1}")
        p(f"s_add_u32 s{t[4]}, s{t[3]}, 8192")
        p("s_mov_b64 exec, 1")
        self.vm(f"buffer_store_dwordx4 {vr(R,4)}, v{vZ}, {W}, s{t[3]} offen sc1")
        self.vm(f"buffer_store_dwordx4 {vr(R+4,4)}, v{vZ}, {W}, s{t[4]} offen sc1")
        p("s_mov_b64 exec, -1")
        F = X
        p(f"v_add_u32 v{vTMP}, s{sLB}, v{vL8}")
        self.epoch()
        self.stamp("x: stats done")
        self.wait(vm='dma')
        for x in range(6):
            for q in range(2): self.ds(f"ds_read_b64_tr_b16 {vr(F+4*x+2*q,2)}, v{vTMP} offset:{x*1024+q*512}", ('f', x))
        p(f"s_lshl_b32 s{t[9]}, s{sT0}, 14"); p(f"s_lshl_b32 s{t[10]}, s{sKS}, 10"); p(f"s_add_u32 s{t[9]}, s{t[9]}, s{t[10]}"); p(f"s_add_u32 s{t[9]}, s{t[9]}, {L.WIN}")
        for x in range(4):
            p(f"s_add_u32 s{t[10]}, s{t[9]}, {16384*x}")
            if x == 3: p(f"s_cmp_eq_u32 s{sw}, 1"); p(f"s_cselect_b32 s{t[10]}, {L.OOB}, s{t[10]}")
            self.wait(ds=('f', x))
            self.vm(f"buffer_store_dwordx4 {vr(F+4*x,4)}, v{vL16}, {W}, s{t[10]} offen sc1")
        p(f"s_and_b32 s{t[9]}, s2, 7"); p(f"s_mul_i32 s{t[9]}, s{t[9]}, 28"); p(f"s_lshr_b32 s{t[10]}, s2, 3"); p(f"s_add_u32 s{t[9]}, s{t[9]}, s{t[10]}")
        p(f"s_lshl_b32 s{t[9]}, s{t[9]}, 12"); p(f"s_lshl_b32 s{t[10]}, s{sw}, 11"); p(f"s_add_u32 s{t[9]}, s{t[9]}, s{t[10]}"); p(f"s_add_u32 s{t[9]}, s{t[9]}, {L.WOUT}")
        p(f"s_cmp_ge_u32 s2, 224"); p(f"s_cselect_b32 s{t[9]}, {L.OOB}, s{t[9]}")
        self.wait(ds='all')
        for x in range(2): self.vm(f"buffer_store_dwordx4 {vr(F+16+4*x,4)}, v{vL16}, {W}, s{t[9]} offen offset:{1024*x} sc1")
        lab = p.newlabel("L_c2")
        p("s_cmp_lt_u32 s2, 8"); p(f"s_cbranch_scc0 {lab}")
        p(f"s_lshl_b32 s{t[3]}, s{sE}, 6"); p(f"s_lshl_b32 s{t[4]}, s2, 8"); p(f"s_add_u32 s{t[4]}, s{t[4]}, {L.C2}")
        self.lane0_store(t[3], t[4])
        p.label(lab)
        SV = S; E8 = Q; A = R; U8 = o
        self.stamp("x: frags done")
        self.wait(vm='c')
        for q in range(4): self.unpack(SV + 2 * q, SV + 2 * q + 1, rc + q)
        for k in range(8): p(f"v_mul_f32 v{E8+k}, {-1.4426950408889634:.10g}, v{SV+k}")
        for k in range(8): p(f"v_exp_f32 v{E8+k}, v{E8+k}")
        for k in range(8): p(f"v_add_f32 v{E8+k}, 1.0, v{E8+k}")
        for k in range(8): p(f"v_rcp_f32 v{E8+k}, v{E8+k}")
        for k in range(8): p(f"v_mul_f32 v{SV+k}, v{SV+k}, v{E8+k}")
        for q in range(4): p(f"v_cvt_pk_bf16_f32 v{E8+q}, v{SV+2*q}, v{SV+2*q+1}")
        for q in range(4): self.unpack(SV + 2 * q, SV + 2 * q + 1, E8 + q)
        for n in range(8):
            self.wait(vm=('m', n))
            uu = U8 + 8 * (n & 1)
            for q in range(4): self.unpack(uu + 2 * q, uu + 2 * q + 1, rm + 4 * n + q)
            s1 = n & 1
            for q in range(4):
                if n == 0: p(f"v_pk_mul_f32 {vr(A+2*q,2)}, {vr(uu+2*q,2)}, {vr(SV,2)} op_sel_hi:[1,0]")
                else: p(f"v_pk_fma_f32 {vr(A+2*q,2)}, {vr(uu+2*q,2)}, {vr(SV+(n&~1),2)}, {vr(A+2*q,2)} op_sel:[0,{s1},0] op_sel_hi:[1,{s1},1]")
        for k in range(8): p(f"v_add_f32_dpp v{A+k}, v{A+k}, v{A+k} row_ror:8 row_mask:0xf bank_mask:0xf")
        for k in range(4): p(f"v_permlane16_swap_b32 v{A+k}, v{A+4+k}")
        for k in range(4): p(f"v_add_f32 v{A+k}, v{A+k}, v{A+4+k}")
        for k in range(2): p(f"v_permlane32_swap_b32 v{A+k}, v{A+2+k}")
        for k in range(2): p(f"v_add_f32 v{A+k}, v{A+k}, v{A+2+k}")
        p(f"v_and_b32 v{vTMP}, 7, v1"); p(f"v_lshlrev_b32 v{vTMP}, 5, v{vTMP}")
        p(f"v_and_b32 v{vTMP2}, 1, v{vH}"); p(f"v_lshl_add_u32 v{vTMP}, v{vTMP2}, 4, v{vTMP}")
        p(f"v_lshrrev_b32 v{vTMP2}, 1, v{vH}"); p(f"v_lshl_add_u32 v{vTMP2}, v{vTMP2}, 3, v{vTMP}")
        p(f"s_mul_i32 s{t[3]}, s{sKQ}, 12288"); p(f"s_lshl_b32 s{t[4]}, s{sCG}, 8"); p(f"s_add_u32 s{t[3]}, s{t[3]}, s{t[4]}"); p(f"s_add_u32 s{t[3]}, s{t[3]}, {L.MODP}")
        p(f"s_cmp_ge_u32 s2, 192"); p(f"s_cselect_b32 s{t[3]}, {L.OOB}, s{t[3]}")
        p("s_mov_b32 exec_lo, 0x00ff00ff"); p("s_mov_b32 exec_hi, 0x00ff00ff")
        self.vm(f"buffer_store_dwordx2 {vr(A,2)}, v{vTMP2}, {W}, s{t[3]} offen sc1")
        p("s_mov_b64 exec, -1")
        self.stamp("x: mod done")
        self.j6_loads()
        p("s_mov_b64 vcc, -1")
        p.label(self.join)
        self.vmq = ['j6'] * 8; self.dsq = ['x']

    def phase1(self):
        p = self.p; t = sT
        V = Alloc(V0, PV_CS, 'v')
        sCH, sHALF, sD, sCX, sCY, sXO0, sXO1, sKB, sXF, sJ6d, sFB, sST = sU[0:12]
        sXO = [sXO0, sXO1]
        p(f"s_lshr_b32 s{sCH}, s{sWAVE}, 1"); p(f"s_and_b32 s{sHALF}, s{sWAVE}, 1"); p(f"s_add_u32 s{sD}, s{sD0}, s{sCH}")
        p(f"s_sub_u32 s{sCX}, 3, s{sHALF}"); p(f"s_mov_b32 s{sCY}, s{sHALF}")
        p(f"s_lshl_b32 s{t[0]}, s{sD}, 12")
        for k, sc in enumerate((sCX, sCY)):
            p(f"s_lshl_b32 s{sXO[k]}, s{sc}, 10"); p(f"s_add_u32 s{sXO[k]}, s{sXO[k]}, s{t[0]}")
        p(f"s_mul_i32 s{sKB}, s{sCH}, {KVL_STRIDE}"); p(f"s_add_u32 s{sKB}, s{sKB}, {KVL}")
        vA, vBX, vBY, vKX, vKY, vst, vg, vg2, vms, vSX, vSY = (V() for _ in range(11))
        p(f"v_and_b32 v{vTMP}, 7, v1"); p(f"v_mul_u32_u24 v{vA}, {KC_STRIDE}, v{vTMP}")
        p(f"v_lshl_add_u32 v{vA}, v{vH}, 8, v{vA}")
        p(f"v_bfe_u32 v{vTMP}, v1, 3, 1"); p(f"v_lshl_add_u32 v{vA}, v{vTMP}, 4, v{vA}")
        p(f"s_mul_i32 s{t[5]}, s{sCH}, {8*KC_STRIDE}"); p(f"v_add_u32 v{vA}, s{t[5]}, v{vA}")
        p(f"v_lshlrev_b32 v{vTMP}, 2, v{vH}"); p(f"v_sub_u32 v{vTMP}, v{vTMP}, v{vN}"); p(f"v_add_u32 v{vTMP}, 63, v{vTMP}"); p(f"v_mul_u32_u24 v{vTMP}, 80, v{vTMP}")
        p(f"v_mul_u32_u24 v{vTMP2}, 80, v{vN}"); p(f"v_lshl_add_u32 v{vTMP2}, v{vH}, 3, v{vTMP2}"); p(f"v_sub_u32 v{vTMP2}, 5064, v{vTMP2}")
        for sc, vb, vk in ((sCX, vBX, vKX), (sCY, vBY, vKY)):
            p(f"s_mul_i32 s{t[5]}, s{sc}, 1280"); p(f"s_sub_u32 s{t[5]}, s{sKB}, s{t[5]}")
            p(f"v_add_u32 v{vb}, s{t[5]}, v{vTMP}"); p(f"v_add_u32 v{vk}, s{t[5]}, v{vTMP2}")
        acc = V(16, 4)
        for k in range(16): p(f"v_mov_b32 v{acc+k}, 0")
        self.barrier()
        self.stamp("kv in LDS")
        pv = V(2); msc = V(4, 2); rx = V(8, 2); rr = V(16, 2); rm = V(16, 2)
        flagld = [f"buffer_load_dword v{pv}, v{vg}, {W}, s{sFB} offen sc1", f"buffer_load_dword v{pv+1}, v{vg2}, {W}, s{sFB} offen sc1"]
        def setup():
            p(f"v_lshlrev_b32 v{vst}, 6, v{vN}"); p(f"v_and_b32 v{vTMP}, 1, v{vH}"); p(f"v_lshl_add_u32 v{vst}, v{vTMP}, 5, v{vst}")
            p(f"v_lshrrev_b32 v{vTMP}, 1, v{vH}"); p(f"v_lshl_add_u32 v{vst}, v{vTMP}, 4, v{vst}")
        def setup2():
            p(f"s_lshr_b32 s{t[2]}, s2, 1"); p(f"s_and_b32 s{t[3]}, s2, 1")
            p(f"s_lshr_b32 s{t[4]}, s{t[2]}, 2"); p(f"s_mul_i32 s{sJ6d}, s{t[4]}, {L.WSTR}"); p(f"s_and_b32 s{t[4]}, s{t[2]}, 3"); p(f"s_lshl_b32 s{t[4]}, s{t[4]}, 10"); p(f"s_add_u32 s{sJ6d}, s{sJ6d}, s{t[4]}")
        def setup3():
            p(f"s_lshl_b32 s{t[4]}, s{t[3]}, 17"); p(f"s_add_u32 s{sJ6d}, s{sJ6d}, s{t[4]}"); p(f"s_lshl_b32 s{t[4]}, s{sWAVE}, 15"); p(f"s_add_u32 s{sJ6d}, s{sJ6d}, s{t[4]}")
            p(f"s_add_u32 s{sJ6d}, s{sJ6d}, {L.WSP}")
        def setup4():
            p(f"s_lshl_b32 s{sFB}, s{sWAVE}, 14"); p(f"s_add_u32 s{sFB}, s{sFB}, {L.F1B}")
            p(f"v_lshlrev_b32 v{vg}, 7, v1"); p(f"v_add_u32 v{vg2}, 8192, v{vg}")
        def setup5():
            p(f"v_and_b32 v{vTMP}, 7, v1"); p(f"v_mul_u32_u24 v{vms}, 12288, v{vTMP}"); p(f"v_lshrrev_b32 v{vTMP}, 3, v1"); p(f"v_min_u32 v{vTMP}, 2, v{vTMP}"); p(f"v_lshl_add_u32 v{vms}, v{vTMP}, 11, v{vms}")
        def setup6():
            p(f"v_lshlrev_b32 v{vTMP}, 7, v{vN}"); p(f"v_lshl_add_u32 v{vTMP}, v{vH}, 4, v{vTMP}")
            for sc, vs in ((sCX, vSX), (sCY, vSY)):
                p(f"s_lshl_b32 s{t[4]}, s{sc}, 11"); p(f"s_add_u32 s{t[4]}, s{t[4]}, {L_WST}"); p(f"v_add_u32 v{vs}, s{t[4]}, v{vTMP}")
        def xflag():
            lab = p.newlabel("L_xf")
            p(f"s_cbranch_vccz {lab}")
            p(f"s_lshl_b32 s{t[3]}, s2, 8"); p(f"s_lshl_b32 s{t[4]}, s{sHALF}, 7"); p(f"s_add_u32 s{t[3]}, s{t[3]}, s{t[4]}"); p(f"s_add_u32 s{t[3]}, s{t[3]}, {L.F1B}")
            p(f"s_waitcnt vmcnt({len(self.vmq)})")
            self.lane0_store(sE, t[3])
            self.stamp("x: F1b set")
            p.label(lab)
        PD = self.o['pd']; NA, NB = PD + 6, PD + 1
        Ar = [V(4, 2) for _ in range(NA)]
        Br = [[V(4, 2) for _ in range(NB)] for _ in range(2)]
        kvv = V(8, 2)
        epi = p.newlabel("L_cepi"); h1 = p.newlabel("L_ch1")
        p(f"s_cmp_eq_u32 s{sHALF}, 1"); p(f"s_cbranch_scc1 {h1}")
        vm0 = list(self.vmq)
        for half in range(2):
            if half == 1: p.label(h1)
            self.vmq = list(vm0); self.dsq = []
            nq = [4 - half, 1 + half]
            steps = [(q, tt) for q in range(nq[0]) for tt in range(16)]
            reads = []; aslot = {}; na = 0; nb = [0, 0]; bslot = {}
            for (q, tt) in steps:
                lst = []
                for tau in ([0, 1, 2] if tt == 0 else [tt + 2]):
                    aslot[(q, tau)] = Ar[na % NA]; na += 1
                    lst.append((('A', q, tau), f"ds_read_b128 {vr(aslot[(q,tau)],4)}, v{vA} offset:{16*(64*q+tau)}"))
                for k, vb in enumerate((vBX, vBY)):
                    if q < nq[k]:
                        bslot[(k, q, tt)] = Br[k][nb[k] % NB]; nb[k] += 1
                        lst.append((('B', k, q, tt), f"ds_read_b128 {vr(bslot[(k,q,tt)],4)}, v{vb} offset:{1280*q + 16*(tt + (tt >> 2))}"))
                reads.append(lst)
            sidx = {st: n for n, st in enumerate(steps)}
            def last_use(key): return sidx[(key[1], min(key[2], 15))] if key[0] == 'A' else sidx[(key[2], key[3])]
            occ = {}
            def rd_items(n):
                out = []
                if n < len(steps):
                    for key, txt in reads[n]:
                        slot = aslot[key[1:]] if key[0] == 'A' else bslot[key[1:]]
                        if slot in occ: assert last_use(occ[slot]) < n - PD, (key, occ[slot])
                        occ[slot] = key
                        out.append((key, txt))
                return out
            if half == 1: self.nstamp -= 3
            nop = lambda: None
            bg1 = [setup, setup2, setup3, setup4, setup5, setup6] + [nop] * self.o.get('xf_delay', 2) + [xflag]
            bg1 += [lambda: (self.srd(SA, P_D, 1024), p(f"s_lshl_b32 s{t[0]}, s{sD}, 1"), self.vm(f"buffer_load_ushort v{msc+3}, v{vZ}, s[{SA}:{SA+3}], s{t[0]} offen", 'D'))]
            bg1 += [nop] * self.o.get('fl_delay', 22)
            bg1 += [lambda x=x: self.vm(x, 'fl') for x in flagld]
            bg2 = []
            for k in range(2):
                bg2.append(lambda k=k: (p(f"s_add_u32 s{t[2]}, s{sXO[k]}, {L.XT}"),
                           self.vm(f"buffer_load_dwordx4 {vr(rx+4*k,4)}, v{vst}, {W}, s{t[2]} offen sc1", 'epi')))
            for n in range(4):
                bg2.append(lambda n=n: (p(f"s_lshl_b32 s{t[1]}, s{sWAVE}, 12"), p(f"s_add_u32 m0, s{t[1]}, {L_WST + 1024*n}"), p(f"s_add_u32 s{t[1]}, s{t[1]}, {L.ST1 + 1024*n}"),
                           self.vm(f"buffer_load_dwordx4 v{vL16}, {W}, s{t[1]} offen sc1 lds", 'epi')))
            bg2.append(lambda: (p(f"s_lshl_b32 s{t[0]}, s{sD}, 2"), p(f"s_add_u32 s{t[0]}, s{t[0]}, {L.MODP}"),
                       self.vm(f"buffer_load_dword v{msc}, v{vms}, {W}, s{t[0]} offen sc1", 'epi')))
            def j6st(n):
                p(f"s_add_u32 s{t[0]}, s{sJ6d}, {4096*n}")
                self.vm(f"buffer_store_dwordx4 {ar(4*n,4)}, v{vL16}, {W}, s{t[0]} offen sc1", 'j6s')
            for n in range(8): bg2 += [lambda n=n: j6st(n)] + [nop] * self.o.get('j6_gap', 1)
            for n in range(PD):
                for key, txt in rd_items(n): self.ds(txt, key)
            total_m = sum(2 * sum(1 for k in range(2) if q < nq[k]) for q, _ in steps)
            mid = int(total_m * self.o.get('mid', 0.6))
            cm = 0; did_mid = False
            for n, (q, tt) in enumerate(steps):
                if not did_mid and cm >= mid:
                    did_mid = True
                    while bg1: bg1.pop(0)()
                    self.stamp("conv mid")
                    self.poll(flagld, [pv, pv + 1], sE, f"s1b{half}", first_issued='fl')
                    p("s_barrier")
                    self.stamp("S1b passed")
                rds = rd_items(n + PD)
                needk = [('A', q, tt), ('A', q, tt + 2)] + [('B', k, q, tt) for k in range(2) if q < nq[k]]
                self.wait(ds=needk)
                ms = [mfma(acc + 8 * k + 4 * r, vr(aslot[(q, tt + 2 * r)], 4), vr(bslot[(k, q, tt)], 4)) for k in range(2) if q < nq[k] for r in range(2)]
                for mi, m in enumerate(ms):
                    p(m); cm += 1
                    if rds: key, txt = rds.pop(0); self.ds(txt, key)
                    if mi == len(ms) - 1:
                        while rds: key, txt = rds.pop(0); self.ds(txt, key)
                    if cm % 2 == 0:
                        bg = bg2 if did_mid else bg1
                        if bg: bg.pop(0)()
            while bg2: bg2.pop(0)()
            if half == 0: p(f"s_branch {epi}")
            vm_end = list(self.vmq)
        p.label(epi)
        self.stamp("conv done")
        for k, vk in enumerate((vKX, vKY)):
            for r in range(2): self.ds(f"ds_read_b64 {vr(kvv+4*k+2*r,2)}, v{vk} offset:{32*(1-r)}")
        self.wait(vm='epi')
        p("s_barrier")
        for k, vs in enumerate((vSX, vSY)):
            for r in range(2):
                self.ds(f"ds_read_b128 {vr(rr+8*k+4*r,4)}, v{vs} offset:{64*r}"); self.ds(f"ds_read_b128 {vr(rm+8*k+4*r,4)}, v{vs} offset:{8192+64*r}")
        for k in range(2):
            b = rx + 4 * k
            p(f"v_permlane16_swap_b32 v{b}, v{b+2}"); p(f"v_permlane16_swap_b32 v{b+1}, v{b+3}")
        for mod in ("quad_perm:[1,0,3,2]", "quad_perm:[2,3,0,1]", "row_half_mirror"):
            p(f"v_add_f32_dpp v{msc}, v{msc}, v{msc} {mod} row_mask:0xf bank_mask:0xf")
        self.rnd(msc)
        sSA, sCA, sGA = t[3], t[4], t[5]
        p(f"v_readlane_b32 s{sSA}, v{msc}, 0"); p(f"v_readlane_b32 s{sCA}, v{msc}, 8"); p(f"v_readlane_b32 s{sGA}, v{msc}, 16")
        p(f"v_mov_b32 v{msc}, s{sSA}"); p(f"v_mov_b32 v{msc+1}, s{sCA}"); p(f"v_mov_b32 v{msc+2}, s{sGA}")
        p(f"v_add_f32 v{msc+1}, 1.0, v{msc+1}"); self.rnd(msc + 1)
        p(f"v_lshlrev_b32 v{msc+3}, 16, v{msc+3}")
        self.wait(ds='all')
        sa, ca1, ga, DD = msc, msc + 1, msc + 2, msc + 3
        def bc(reg): return vr(reg & ~1, 2), reg & 1
        T = [(k, r) for k in range(2) for r in range(2)]
        X = Ar[0]; assert Ar[3] == X + 12
        KV = Ar[4]; assert Ar[7] == KV + 12
        H = Br[0][0]; assert Br[0][3] == H + 12
        O = Br[1][0]
        for n, (k, r) in enumerate(T):
            x0 = rx + 4 * k + 2 * r; k0 = kvv + 4 * k + 2 * r
            self.unpack(X + 4 * n, X + 4 * n + 1, x0); self.unpack(X + 4 * n + 2, X + 4 * n + 3, x0 + 1)
            self.unpack(KV + 4 * n + 1, KV + 4 * n, k0 + 1); self.unpack(KV + 4 * n + 3, KV + 4 * n + 2, k0)
        for o in range(0, 16, 2): p(f"v_pk_fma_f32 {vr(H+o,2)}, {vr(X+o,2)}, {vr(rr+o,2)}, {vr(rm+o,2)}")
        (c1, s1) = bc(DD)
        for o in range(0, 16, 2): p(f"v_pk_fma_f32 {vr(KV+o,2)}, {vr(KV+o,2)}, {c1}, {vr(acc+o,2)} op_sel:[0,{s1},0] op_sel_hi:[1,{s1},1]")
        (c1, s1), (c2, s2) = bc(ca1), bc(sa)
        for o in range(0, 16, 2): p(f"v_pk_fma_f32 {vr(H+o,2)}, {vr(H+o,2)}, {c1}, {c2} op_sel:[0,{s1},{s2}] op_sel_hi:[1,{s1},{s2}]")
        for o in range(0, 16, 2): p(f"v_pk_mul_f32 {vr(H+o,2)}, {vr(H+o,2)}, {vr(KV+o,2)}")
        (c1, s1) = bc(ga)
        for o in range(0, 16, 2): p(f"v_pk_fma_f32 {vr(H+o,2)}, {vr(H+o,2)}, {c1}, {vr(X+o,2)} op_sel:[0,{s1},0] op_sel_hi:[1,{s1},1]")
        for k in range(8): p(f"v_cvt_pk_bf16_f32 v{O+k}, v{H+2*k}, v{H+2*k+1}")
        for k in range(2):
            b = O + 4 * k
            p(f"v_permlane16_swap_b32 v{b}, v{b+2}"); p(f"v_permlane16_swap_b32 v{b+1}, v{b+3}")
            p(f"s_add_u32 s{t[0]}, s{sXO[k]}, {L.X1T}")
            self.vm(f"buffer_store_dwordx4 {vr(b,4)}, v{vst}, {W}, s{t[0]} offen sc1", 'x1st')
        p(f"s_lshr_b32 s{t[0]}, s{sWAVE}, 1"); p(f"s_lshl_b32 s{t[0]}, s{t[0]}, 11"); p(f"s_sub_u32 s{t[0]}, {L.MODP + 4*2048}, s{t[0]}")
        p(f"s_lshl_b32 s{t[1]}, s{sHALF}, 10"); p(f"s_add_u32 s{t[0]}, s{t[0]}, s{t[1]}")
        for part in range(8):
            self.vm(f"buffer_load_dwordx4 {vr(PV_CS+4*part,4)}, v{vL16}, {W}, s{t[0]} offen sc1", 'cs')
            if part < 7: p(f"s_add_u32 s{t[0]}, s{t[0]}, 12288")
        self.stamp("x1 stored")

    def win_items(self, which):
        p = self.p; t = sT
        s0, s1 = sU[10], sU[11]
        p(f"s_mul_i32 s{s0}, s{sJ}, 7"); p(f"s_lshl_b32 s{s1}, s{sWAVE}, 1"); p(f"s_add_u32 s{s0}, s{s0}, s{s1}")
        p(f"s_lshl_b32 s{s0}, s{s0}, 14"); p(f"s_add_u32 s{s0}, s{s0}, {L.WIN + (56*16384 if which == 0 else 0)}")
        p(f"s_add_u32 s{s1}, s{s0}, 16384"); p(f"s_cmp_eq_u32 s{sWAVE}, 3"); p(f"s_cselect_b32 s{s1}, {L.OOB}, s{s1}")
        items = []
        for ks in range(16):
            for x in range(2):
                def f(ks=ks, x=x):
                    sr_ = (s0, s1)[x]
                    if ks and ks % 4 == 0: p(f"s_add_u32 s{sr_}, s{sr_}, 4096")
                    self.vm(f"buffer_load_dwordx4 {ar(128*which+64*x+4*ks,4)}, v{vL16}, {W}, s{sr_} offen offset:{(ks%4)*1024} sc1", ('win', which, ks))
                items.append(f)
        return items

    def wsp_items(self, which):
        p = self.p; t = sT
        sb = sU[6:10]
        if which == 0:
            for x in range(4):
                p(f"s_add_u32 s{sb[x]}, s{sWAVE}, {x}"); p(f"s_and_b32 s{sb[x]}, s{sb[x]}, 3"); p(f"s_lshl_b32 s{sb[x]}, s{sb[x]}, 10")
                p(f"s_mul_i32 s{t[12]}, s{sI}, {L.WSTR}"); p(f"s_add_u32 s{sb[x]}, s{sb[x]}, s{t[12]}")
                p(f"s_lshl_b32 s{t[12]}, s{sWAVE}, 16"); p(f"s_add_u32 s{sb[x]}, s{sb[x]}, s{t[12]}"); p(f"s_add_u32 s{sb[x]}, s{sb[x]}, {L.WSP}")
        items = []
        for ks in range(8 * which, 8 * which + 8):
            for x in range(4):
                def f(ks=ks, x=x):
                    self.vm(f"buffer_load_dwordx4 {ar(16*ks+4*x,4)}, v{vL16}, {W}, s{sb[x]} offen sc1", ('wsp', ks))
                    p(f"s_add_u32 s{sb[x]}, s{sb[x]}, 4096")
                items.append(f)
        return items

    def gelu_items(self, pairs, tmp, c1v, c2s):
        p = self.p
        c1p, c1s = vr(c1v & ~1, 2), c1v & 1
        L_ = []
        for x, u in zip(pairs, tmp): L_.append(f"v_pk_mul_f32 {vr(u,2)}, {vr(x,2)}, {vr(x,2)}")
        for x, u in zip(pairs, tmp): L_.append(f"v_pk_fma_f32 {vr(u,2)}, {vr(u,2)}, s[{c2s}:{c2s+1}], {c1p} op_sel:[0,0,{c1s}] op_sel_hi:[1,0,{c1s}]")
        for x, u in zip(pairs, tmp): L_.append(f"v_pk_mul_f32 {vr(u,2)}, {vr(u,2)}, {vr(x,2)}")
        for x, u in zip(pairs, tmp): L_ += [f"v_exp_f32 v{u}, v{u}", f"v_exp_f32 v{u+1}, v{u+1}"]
        for x, u in zip(pairs, tmp): L_.append(f"v_pk_add_f32 {vr(u,2)}, {vr(u,2)}, 1.0 op_sel_hi:[1,0]")
        for x, u in zip(pairs, tmp): L_ += [f"v_rcp_f32 v{u}, v{u}", f"v_rcp_f32 v{u+1}, v{u+1}"]
        for x, u in zip(pairs, tmp): L_.append(f"v_pk_mul_f32 {vr(x,2)}, {vr(x,2)}, {vr(u,2)}")
        return L_

    def lnfin2(self, S, Q, n, r_out, m_out):
        p = self.p
        p(f"v_mul_f32 v{S}, {-1.0/n:.10g}, v{S}"); p(f"v_mul_f32 v{Q}, {1.0/n:.10g}, v{Q}")
        p(f"v_fma_f32 v{Q}, -v{S}, v{S}, v{Q}"); p(f"v_max_f32 v{Q}, 0, v{Q}"); p(f"v_add_f32 v{Q}, 1e-5, v{Q}")
        p(f"v_rsq_f32 v{r_out}, v{Q}"); p(f"v_mul_f32 v{m_out}, v{S}, v{r_out}")

    def phase2(self):
        p = self.p; t = sT
        V = Alloc(V0, PV_CS, 'v')
        vc1, vag = V(), V()
        p(f"v_mov_b32 v{vc1}, -2.302208198")
        sC2 = sU[0]; assert sC2 % 2 == 0
        p(f"s_mov_b32 s{sC2}, -0.1029432397"); p(f"s_mov_b32 s{sC2+1}, -0.1029432397")
        sW512 = sU[2]; p(f"s_lshl_b32 s{sW512}, s{sWAVE}, 9")
        p(f"s_and_b32 s{t[0]}, s2, 7"); p(f"s_lshl_b32 s{t[0]}, s{t[0]}, 8"); p(f"s_add_u32 s{t[0]}, s{t[0]}, {L.C2}")
        win0 = self.win_items(0)
        self.wait(vm='x1st')
        self.barrier()
        lab = p.newlabel("L_a2")
        p(f"s_cmp_eq_u32 s{sWAVE}, 0"); p(f"s_cbranch_scc0 {lab}")
        self.lane0_store(None, t[0], atomic=True)
        p.label(lab)
        self.stamp("S2 arrive")
        for _ in range(self.o.get('win0_lead', 8)): win0.pop(0)()
        C = PV_CS
        p(f"v_bfe_u32 v{vTMP}, v0, 3, 4"); p(f"v_lshlrev_b32 v{vTMP}, 6, v{vTMP}")
        p(f"v_and_b32 v{vTMP2}, 3, v0"); p(f"v_lshl_add_u32 v{vTMP}, v{vTMP2}, 4, v{vTMP}")
        p(f"v_bfe_u32 v{vTMP2}, v0, 2, 1"); p(f"v_lshl_add_u32 v{vTMP}, v{vTMP2}, 3, v{vTMP}")
        p(f"v_lshrrev_b32 v{vTMP2}, 7, v0"); p(f"v_lshl_add_u32 v{vTMP}, v{vTMP2}, 10, v{vTMP}")
        p(f"v_add_u32 v{vTMP}, {L_AUG}, v{vTMP}")
        p(f"s_cmp_lt_u32 s{sWAVE}, 2"); p(f"s_cselect_b32 s{t[2]}, 1.0, 0"); p(f"s_mov_b32 s{t[3]}, s{t[2]}")
        p(f"v_lshlrev_b32 v{vTMP2}, 4, v0"); p(f"v_add_u32 v{vTMP2}, {L_CB}, v{vTMP2}")
        self.wait(vm='cs')
        for w in (16, 8, 4):
            for k in range(0, w, 2): p(f"v_pk_add_f32 {vr(C+k,2)}, {vr(C+k,2)}, {vr(C+w+k,2)}")
        p(f"v_cvt_pk_bf16_f32 v{C+4}, v{C}, v{C+1}"); p(f"v_cvt_pk_bf16_f32 v{C+5}, v{C+2}, v{C+3}")
        self.unpack(C, C + 1, C + 4); self.unpack(C + 2, C + 3, C + 5)
        assert t[2] % 2 == 0
        for o in (0, 2): p(f"v_pk_add_f32 {vr(C+o,2)}, {vr(C+o,2)}, s[{t[2]}:{t[3]}]")
        p(f"v_cvt_pk_bf16_f32 v{C+4}, v{C}, v{C+1}"); p(f"v_cvt_pk_bf16_f32 v{C+5}, v{C+2}, v{C+3}")
        self.ds(f"ds_write_b64 v{vTMP}, {vr(C+4,2)}")
        self.unpack(C, C + 1, C + 4); self.unpack(C + 2, C + 3, C + 5)
        lab = p.newlabel("L_cbw")
        p(f"s_cbranch_scc0 {lab}")
        p(f"ds_write_b128 v{vTMP2}, {vr(C,4)}")
        p.label(lab)
        for _ in range(4): win0.pop(0)()
        self.barrier()
        V.limit = PV_XRES
        au2 = V(8, 4); au1 = V(8, 4)
        acc2 = V(32, 4); acc1 = V(32, 4)
        m00 = V.mark()
        CB = V(16, 2)
        m0 = V.mark()
        AG = V(64, 4)
        p(f"v_and_b32 v{vTMP}, 1, v1"); p(f"v_lshlrev_b32 v{vag}, 10, v{vTMP}"); p(f"v_lshl_add_u32 v{vag}, v{vH}, 4, v{vag}"); p(f"v_add_u32 v{vag}, {L_AUG}, v{vag}")
        for ks in range(16): self.ds(f"ds_read_b128 {vr(AG+4*ks,4)}, v{vag} offset:{64*ks}", ('ag', ks))
        p(f"v_lshrrev_b32 v{vTMP}, 3, v0"); p(f"v_lshlrev_b32 v{vTMP}, 2, v{vTMP}"); p(f"v_add_u32 v{vTMP}, {L_CB}, v{vTMP}")
        p(f"v_add_u32 v{vTMP2}, 1024, v{vTMP}")
        for n in range(0, 16, 2): self.ds(f"ds_read2_b32 {vr(CB+n,2)}, v{vTMP if n < 8 else vTMP2} offset0:{32*(n&7)} offset1:{32*(n&7)+32}")
        for k in range(16): p(f"v_mov_b32 v{au2+k}, 0")
        for k in range(64): p(f"v_mov_b32 v{acc2+k}, 0")
        self.wait(ds='all')
        for ks in range(16):
            for _ in range(2):
                if win0: win0.pop(0)()
            self.wait(vm=('win', 0, ks))
            for x in range(2): p(mfma(au2 + 4 * x, vr(AG + 4 * ks, 4), ar(64 * x + 4 * ks, 4)))
        V.reset(m0)
        self.stamp("aug2 done")
        pv = V(2); vx, vw, vw2 = V(), V(), V()
        p(f"v_lshrrev_b32 v{vTMP}, 3, v0"); p(f"v_and_b32 v{vTMP2}, 7, v0")
        p(f"v_lshlrev_b32 v{vx}, 12, v{vTMP}"); p(f"v_lshl_add_u32 v{vx}, v{vTMP2}, 4, v{vx}")
        p(f"v_lshlrev_b32 v{vw}, 5, v{vTMP}"); p(f"v_and_b32 v{vTMP}, 1, v{vTMP2}"); p(f"v_lshl_add_u32 v{vw}, v{vTMP}, 4, v{vw}")
        p(f"v_lshrrev_b32 v{vTMP}, 1, v{vTMP2}"); p(f"v_mul_u32_u24 v{vTMP}, {XA_FR}, v{vTMP}"); p(f"v_add_u32 v{vw}, v{vw}, v{vTMP}")
        p(f"v_add_u32 v{vw2}, {L_XRES}, v{vw}")
        win1 = self.win_items(1)
        lab = p.newlabel("L_s2")
        p(f"s_cmp_eq_u32 s{sWAVE}, 0"); p(f"s_cbranch_scc0 {lab}")
        p(f"v_min_u32 v{pv+1}, 7, v1"); p(f"v_lshlrev_b32 v{pv+1}, 8, v{pv+1}")
        p(f"s_mov_b32 s{t[0]}, {L.C2}"); p(f"s_lshl_b32 s{t[1]}, s{sE}, 6"); p(f"s_add_u32 s{t[1]}, s{t[1]}, 32")
        self.poll([f"buffer_load_dword v{pv}, v{pv+1}, {W}, s{t[0]} offen sc1"], [pv], t[1], "s2")
        p.label(lab)
        p(f"s_lshl_b32 s{t[0]}, s{sI}, 7"); p(f"s_add_u32 s{t[0]}, s{t[0]}, {L.X1T}")
        p("s_barrier")
        self.stamp("S2 passed")
        raw = V(64, 4)
        for n in range(16):
            self.vm(f"buffer_load_dwordx4 {vr(raw+4*n,4)}, v{vx}, {W}, s{t[0]} offen sc1", ('x1', n))
            if n < 15: p(f"s_add_u32 s{t[0]}, s{t[0]}, {32*4096}")
        S = V(8, 2); Q = V(8, 2); Xu = [V(8, 2), V(8, 2)]; Pk = [V(4, 2), V(4, 2)]
        for n in range(16):
            X = Xu[n & 1]; PK = Pk[n & 1]
            self.wait(vm=('x1', n | 1) if n % 2 == 0 else None)
            if n % 2 == 0:
                lab = p.newlabel("L_xr")
                p(f"s_cmp_eq_u32 s{sJ}, {n//2}"); p(f"s_cbranch_scc0 {lab}")
                p(f"ds_write_b128 v{vw2}, {vr(raw+4*n,4)}"); p(f"ds_write_b128 v{vw2}, {vr(raw+4*n+4,4)} offset:{4*XA_FR}")
                p.label(lab)
            for q in range(4): self.unpack(X + 2 * q, X + 2 * q + 1, raw + 4 * n + q)
            if win1 and n >= self.o.get('win1_from', 4): win1.pop(0)()
            for q in range(4):
                if n == 0: p(f"v_pk_mul_f32 {vr(Q+2*q,2)}, {vr(X+2*q,2)}, {vr(X+2*q,2)}")
                else: p(f"v_pk_fma_f32 {vr(Q+2*q,2)}, {vr(X+2*q,2)}, {vr(X+2*q,2)}, {vr(Q+2*q,2)}")
            for q in range(4):
                if n == 0: p(f"v_pk_add_f32 {vr(S+2*q,2)}, {vr(X+2*q,2)}, 0 op_sel_hi:[1,0]")
                else: p(f"v_pk_add_f32 {vr(S+2*q,2)}, {vr(S+2*q,2)}, {vr(X+2*q,2)}")
            cb = CB + n; sel = cb & 1
            for q in range(4): p(f"v_pk_mul_f32 {vr(X+2*q,2)}, {vr(X+2*q,2)}, {vr(cb & ~1,2)} op_sel:[0,{sel}] op_sel_hi:[1,{sel}]")
            for q in range(4): p(f"v_cvt_pk_bf16_f32 v{PK+q}, v{X+2*q}, v{X+2*q+1}")
            self.ds(f"ds_write_b128 v{vw}, {vr(PK,4)} offset:{L_XA + n*4*XA_FR}")
        for r in list(range(S, S + 8)) + list(range(Q, Q + 8)):
            p(f"v_add_f32_dpp v{r}, v{r}, v{r} row_ror:8 row_mask:0xf bank_mask:0xf")
        for k in range(8): p(f"v_permlane16_swap_b32 v{S+k}, v{Q+k}")
        for k in range(8): p(f"v_add_f32 v{S+k}, v{S+k}, v{Q+k}")
        for k in range(4): p(f"v_permlane32_swap_b32 v{S+k}, v{S+4+k}")
        for k in range(4): p(f"v_add_f32 v{S+k}, v{S+k}, v{S+4+k}")
        p(f"v_and_b32 v{vTMP}, 1, v{vH}"); p(f"v_lshlrev_b32 v{vTMP}, 8, v{vTMP}")
        p(f"v_and_b32 v{vTMP2}, 7, v1"); p(f"v_lshl_add_u32 v{vTMP}, v{vTMP2}, 5, v{vTMP}")
        p(f"v_lshrrev_b32 v{vTMP2}, 1, v{vH}"); p(f"v_lshl_add_u32 v{vTMP}, v{vTMP2}, 4, v{vTMP}")
        p(f"s_add_u32 s{t[0]}, s{sW512}, {L_STP}"); p(f"v_add_u32 v{vTMP}, s{t[0]}, v{vTMP}")
        self.ds(f"ds_write_b128 v{vTMP}, {vr(S,4)}")
        self.barrier()
        self.stamp("staged")
        V.reset(m00)
        T8 = V(8, 2); FB = [V(16, 4), V(16, 4)]; vl8b, vst2, vrow, vzs = V(), V(), V(), V()
        cs1 = FB[0]; bi1 = FB[0] + 8
        p(f"v_add_u32 v{vl8b}, {32*XA_FR}, v{vL8}")
        def aread(ks, rt, q):
            self.ds(f"ds_read_b64_tr_b16 {vr(FB[ks&1]+4*rt+2*q,2)}, v{vL8 if ks < 8 else vl8b} offset:{L_XA + ((ks&7)*4+rt)*XA_FR + q*512}", ('a', ks, rt))
        def areads(ks): return [lambda rt=rt, q=q: aread(ks, rt, q) for rt in range(4) for q in range(2)]
        for f in areads(0): f()
        p(f"v_add_u32 v{vTMP}, {L_STP}, v{vL4}")
        for w in range(4): self.ds(f"ds_read2st64_b32 {vr(T8+2*w,2)}, v{vTMP} offset0:{2*w} offset1:{2*w+1}", 't8')
        p(f"s_add_u32 s{t[0]}, s{sW512}, {L_ST2}"); p(f"v_add_u32 v{vst2}, s{t[0]}, v{vL4}")
        p(f"v_lshlrev_b32 v{vrow}, 4, v{vH}"); p(f"v_add_u32 v{vrow}, s{t[0]}, v{vrow}")
        def ln2_fin():
            self.wait(ds='t8')
            p(f"v_pk_add_f32 {vr(T8,2)}, {vr(T8,2)}, {vr(T8+2,2)}"); p(f"v_pk_add_f32 {vr(T8+4,2)}, {vr(T8+4,2)}, {vr(T8+6,2)}")
            p(f"v_pk_add_f32 {vr(T8,2)}, {vr(T8,2)}, {vr(T8+4,2)}")
            self.lnfin2(T8, T8 + 1, 512, T8 + 2, T8 + 3)
            self.ds(f"ds_write2st64_b32 v{vst2}, v{T8+2}, v{T8+3} offset0:0 offset1:1")
            p(f"s_mul_i32 s{t[0]}, s{sWAVE}, {XA_FR}"); p(f"s_add_u32 s{t[0]}, s{t[0]}, {L_XRES}"); p(f"v_add_u32 v{vTMP2}, s{t[0]}, v{vL8}")
            for dt in range(4): self.ds(f"ds_read_b64_tr_b16 {vr(PV_XRES+2*dt,2)}, v{vTMP2} offset:{(dt>>1)*4*XA_FR + (dt&1)*512}")
        def gemm1(acc, abase, swap, bg, every, wtag, hooks={}):
            cm = 0
            for ks in range(16):
                rds = areads(ks + 1) if ks < 15 else []
                if wtag is not None: self.wait(vm=(wtag[0], wtag[1], ks))
                for rt in range(4):
                    self.wait(ds=('a', ks, rt))
                    for x in range(2):
                        a = vr(FB[ks & 1] + 4 * rt, 4); b = ar(abase + 64 * x + 4 * ks, 4)
                        if swap: a, b = b, a
                        p(mfma(acc + 16 * x + 4 * rt, a, b)); cm += 1
                        if rds: rds.pop(0)()
                        if bg and cm % every == 0: bg.pop(0)()
                if ks in hooks: hooks[ks]()
            while bg: bg.pop(0)()
        R2 = V(16, 4); M2 = V(16, 4); SS = V(16, 4); QQ = V(16, 4); TT = V(16, 2)
        def rm_reads(off):
            for rt in range(4):
                self.ds(f"ds_read_b128 {vr(R2+4*rt,4)}, v{vrow} offset:{off+64*rt}", 'rm'); self.ds(f"ds_read_b128 {vr(M2+4*rt,4)}, v{vrow} offset:{off+256+64*rt}", 'rm')
        gemm1(acc2, 0, False, win1, 4, None, {0: ln2_fin, 14: lambda: rm_reads(0)})
        self.stamp("z2 mfma")
        for f in areads(0): f()
        self.wait(ds='rm')
        for x in range(2):
            prs = [acc2 + 16 * x + 2 * k for k in range(8)]; tmp = [TT + 2 * k for k in range(8)]
            for k in range(8): p(f"v_pk_fma_f32 {vr(tmp[k],2)}, {vr(M2+2*k,2)}, {vr(au2+4*x,2)}, {vr(au2+4*x,2)} op_sel:[0,0,1] op_sel_hi:[1,0,1]")
            for k in range(8): p(f"v_pk_fma_f32 {vr(prs[k],2)}, {vr(prs[k],2)}, {vr(R2+2*k,2)}, {vr(tmp[k],2)}")
            for x_ in self.gelu_items(prs, tmp, vc1, sC2): p(x_)
            for k in range(8):
                if x == 0: p(f"v_pk_mul_f32 {vr(QQ+2*k,2)}, {vr(prs[k],2)}, {vr(prs[k],2)}")
                else:
                    p(f"v_pk_fma_f32 {vr(QQ+2*k,2)}, {vr(prs[k],2)}, {vr(prs[k],2)}, {vr(QQ+2*k,2)}")
                    p(f"v_pk_add_f32 {vr(SS+2*k,2)}, {vr(prs[k],2)}, {vr(acc2+2*k,2)}")
        for k in range(16): p(f"v_add_f32_dpp v{SS+k}, v{SS+k}, v{SS+k} row_ror:8 row_mask:0xf bank_mask:0x3")
        for k in range(16): p(f"v_add_f32_dpp v{SS+k}, v{QQ+k}, v{QQ+k} row_ror:8 row_mask:0xf bank_mask:0xc")
        for k in range(8): p(f"v_add_f32_dpp v{SS+k}, v{SS+k}, v{SS+k} row_half_mirror row_mask:0xf bank_mask:0x5")
        for k in range(8): p(f"v_add_f32_dpp v{SS+k}, v{SS+8+k}, v{SS+8+k} row_half_mirror row_mask:0xf bank_mask:0xa")
        for mod in ("quad_perm:[1,0,3,2]", "quad_perm:[2,3,0,1]"):
            for k in range(8): p(f"v_add_f32_dpp v{SS+k}, v{SS+k}, v{SS+k} {mod} row_mask:0xf bank_mask:0xf")
        p(f"v_bfe_u32 v{vTMP}, v1, 2, 2"); p(f"v_lshlrev_b32 v{vTMP}, 7, v{vTMP}"); p(f"v_lshl_add_u32 v{vTMP}, v{vH}, 4, v{vTMP}")
        p(f"s_add_u32 s{t[0]}, s{sW512}, {L_ZP}"); p(f"v_add_u32 v{vTMP}, s{t[0]}, v{vTMP}")
        self.ds(f"ds_write_b128 v{vTMP}, {vr(SS,4)}"); self.ds(f"ds_write_b128 v{vTMP}, {vr(SS+4,4)} offset:64")
        wsp0 = self.wsp_items(0)
        self.barrier()
        lab = p.newlabel("L_g3")
        p(f"s_cmp_eq_u32 s{sWAVE}, 0"); p(f"s_cbranch_scc0 {lab}")
        p(f"v_add_u32 v{vTMP}, {L_ZP}, v{vL4}")
        for w in range(4): p(f"ds_read2st64_b32 {vr(T8+2*w,2)}, v{vTMP} offset0:{2*w} offset1:{2*w+1}")
        p(f"s_lshl_b32 s{t[0]}, s{sI}, 3"); p(f"s_add_u32 s{t[0]}, s{t[0]}, s{sJ}"); p(f"s_lshl_b32 s{t[0]}, s{t[0]}, 10"); p(f"s_add_u32 s{t[0]}, s{t[0]}, {L.ST3}")
        p("s_waitcnt lgkmcnt(0)")
        p(f"v_pk_add_f32 {vr(T8,2)}, {vr(T8,2)}, {vr(T8+2,2)}"); p(f"v_pk_add_f32 {vr(T8+4,2)}, {vr(T8+4,2)}, {vr(T8+6,2)}")
        p(f"v_add_f32 v{T8+2}, v{T8+1}, v{T8+5}"); p(f"v_add_f32 v{T8}, v{T8}, v{T8+4}")
        p(f"v_mov_b32 v{T8+1}, s{sE}"); p(f"v_mov_b32 v{T8+3}, s{sE}")
        p(f"buffer_store_dwordx4 {vr(T8,4)}, v{vL16}, {W}, s{t[0]} offen sc1")
        p.label(lab)
        self.stamp("granule")
        AGz = SS
        def aug1(lo):
            def f():
                for ks in range(lo, lo + 8): self.ds(f"ds_read_b128 {vr(AGz+4*(ks&7),4)}, v{vag} offset:{64*ks}", ('ag', ks))
            return f
        def aug1m(lo):
            for ks in range(lo, lo + 8):
                self.wait(ds=('ag', ks))
                for x in range(2): p(mfma(au1 + 4 * x, ar(128 + 64 * x + 4 * ks, 4), vr(AGz + 4 * (ks & 7), 4)))
        gemm1(acc1, 128, True, wsp0, 4, ('win', 1), {5: aug1(0), 7: lambda: aug1m(0), 13: aug1(8), 15: lambda: aug1m(8)})
        self.stamp("z1 mfma")
        GR = SS
        p(f"s_lshl_b32 s{t[0]}, s{sI}, 13"); p(f"s_add_u32 s{t[0]}, s{t[0]}, {L.ST3}"); p(f"s_add_u32 s{t[1]}, s{t[0]}, 4096")
        p(f"v_and_b32 v{vTMP}, 1, v{vH}"); p(f"v_lshlrev_b32 v{vzs}, 9, v{vTMP}")
        p(f"v_lshrrev_b32 v{vTMP}, 1, v{vH}"); p(f"v_lshl_add_u32 v{vzs}, v{vTMP}, 8, v{vzs}"); p(f"v_lshl_add_u32 v{vzs}, v{vN}, 4, v{vzs}")
        z0, z1_, z2_, z3 = t[4:8]
        p(f"s_mul_i32 s{z0}, s{sI}, 14"); p(f"s_lshl_b32 s{z1_}, s{sWAVE}, 1"); p(f"s_add_u32 s{z0}, s{z0}, s{z1_}"); p(f"s_lshl_b32 s{z0}, s{z0}, 10")
        p(f"s_mul_i32 s{z1_}, s{sJ}, {L.ZSTR}"); p(f"s_add_u32 s{z0}, s{z0}, s{z1_}"); p(f"s_add_u32 s{z0}, s{z0}, {L.Z2N}")
        p(f"s_add_u32 s{z1_}, s{z0}, 7168"); p(f"s_add_u32 s{z2_}, s{z0}, 1024"); p(f"s_add_u32 s{z3}, s{z1_}, 1024")
        p(f"s_cmp_eq_u32 s{sWAVE}, 3"); p(f"s_cselect_b32 s{z2_}, {L.OOB}, s{z2_}"); p(f"s_cselect_b32 s{z3}, {L.OOB}, s{z3}")
        self.poll([f"buffer_load_dwordx4 {vr(GR+4*jj,4)}, v{vL16}, {W}, s{t[jj>>2]} offen offset:{(jj&3)*1024} sc1" for jj in range(8)],
                  [GR + 4 * jj + o for jj in range(8) for o in (1, 3)], sE, "s3")
        for w in (4, 2, 1):
            for jj in range(w):
                for o in (0, 2): p(f"v_add_f32 v{GR+4*jj+o}, v{GR+4*jj+o}, v{GR+4*(jj+w)+o}")
        self.lnfin2(GR, GR + 2, 896, GR + 4, GR + 5)
        p(f"v_add_u32 v{vTMP}, {L_ST3 - L_ST2}, v{vst2}")
        self.ds(f"ds_write2st64_b32 v{vTMP}, v{GR+4}, v{GR+5} offset0:0 offset1:1")
        self.wait(ds='all')
        rm_reads(L_ST3 - L_ST2)
        self.wait(ds='all')
        self.stamp("S3 done")
        for x in range(2):
            for k in range(8):
                a = acc2 + 16 * x + 2 * k
                p(f"v_pk_fma_f32 {vr(a,2)}, {vr(a,2)}, {vr(R2+2*k,2)}, {vr(M2+2*k,2)}")
            for k in range(8):
                a = acc2 + 16 * x + 2 * k
                p(f"v_cvt_pk_bf16_f32 v{TT+8*x+k}, v{a}, v{a+1}")
            for kk in range(2):
                b = TT + 8 * x + 4 * kk
                p(f"v_permlane16_swap_b32 v{b}, v{b+2}"); p(f"v_permlane16_swap_b32 v{b+1}, v{b+3}")
                self.vm(f"buffer_store_dwordx4 {vr(b,4)}, v{vzs}, {W}, s{t[4+2*x+kk]} offen sc1", 'zst')
        wsp1 = self.wsp_items(1)
        for _ in range(self.o.get('pre_f4', 6)): wsp1.pop(0)()
        RL = R2; ML = R2 + 4
        p(f"v_lshlrev_b32 v{vTMP}, 2, v{vN}"); p(f"s_add_u32 s{t[0]}, s{sW512}, {L_ST2}"); p(f"v_add_u32 v{vTMP}, s{t[0]}, v{vTMP}")
        for st in range(4):
            self.ds(f"ds_read_b32 v{RL+st}, v{vTMP} offset:{64*st}"); self.ds(f"ds_read_b32 v{ML+st}, v{vTMP} offset:{256+64*st}")
        for k in range(8):
            p(f"v_mov_b32_dpp v{cs1+k}, v{au1+k} quad_perm:[0,0,2,2] row_mask:0xf bank_mask:0xf")
            p(f"v_mov_b32_dpp v{bi1+k}, v{au1+k} quad_perm:[1,1,3,3] row_mask:0xf bank_mask:0xf")
        p(f"s_lshl_b32 s{t[0]}, s{sJ}, 5"); p(f"s_add_u32 s{t[0]}, s{t[0]}, s{sI}"); p(f"s_lshl_b32 s{t[0]}, s{t[0]}, 7"); p(f"s_add_u32 s{t[0]}, s{t[0]}, {L.F4}")
        self.wait(vm='zst')
        self.barrier()
        lab = p.newlabel("L_f4")
        p(f"s_cmp_eq_u32 s{sWAVE}, 0"); p(f"s_cbranch_scc0 {lab}")
        self.lane0_store(sE, t[0])
        p.label(lab)
        self.stamp("F4 set")
        p(f"s_lshl_b32 s{t[0]}, s{sWAVE}, 12"); p(f"s_add_u32 s{t[0]}, s{t[0]}, {L_Z1}"); p(f"v_add_u32 v{vzs}, s{t[0]}, v{vL8}")
        PK = M2
        main = []
        for x in range(2):
            prs = [acc1 + 16 * x + 2 * k for k in range(8)]; tmp = [SS + 2 * k for k in range(8)]
            for k in range(8):
                st = k >> 1; o = 2 * (k & 1); ms = (ML + st) & 1
                main.append(f"v_pk_fma_f32 {vr(tmp[k],2)}, {vr(cs1+4*x+o,2)}, {vr((ML+st)&~1,2)}, {vr(bi1+4*x+o,2)} op_sel:[0,{ms},0] op_sel_hi:[1,{ms},1]")
            for k in range(8):
                st = k >> 1; rs = (RL + st) & 1
                main.append(f"v_pk_fma_f32 {vr(prs[k],2)}, {vr(prs[k],2)}, {vr((RL+st)&~1,2)}, {vr(tmp[k],2)} op_sel:[0,{rs},0] op_sel_hi:[1,{rs},1]")
            main += self.gelu_items(prs, tmp, vc1, sC2)
            for k in range(8): main.append(f"v_cvt_pk_bf16_f32 v{PK+8*x+k}, v{prs[k]}, v{prs[k]+1}")
            for st in range(4): main.append(f"ds_write_b64 v{vzs}, {vr(PK+8*x+2*st,2)} offset:{x*2048+st*512}")
        self.mix([lambda m=m: (self.ds(m) if m.startswith('ds_') else p(m)) for m in main], wsp1, every=6)
        self.stamp("z1 epi")

    def phase3(self):
        p = self.p; t = sT
        V = Alloc(V0, PV_XRES, 'v')
        vbs = V(); pv = V(2); va = [V() for _ in range(3)]
        acc = V(112, 4); RING = 3
        ZB = [V(28, 4) for _ in range(RING)]
        GP = V(8, 2)
        self.srd(SA, P_BSP, 4096)
        p(f"v_lshlrev_b32 v{vTMP}, 1, v{vN}"); p(f"s_lshl_b32 s{t[0]}, s{sI}, 7"); p(f"s_lshl_b32 s{t[1]}, s{sWAVE}, 5"); p(f"s_add_u32 s{t[0]}, s{t[0]}, s{t[1]}")
        self.vm(f"buffer_load_ushort v{vbs}, v{vTMP}, s[{SA}:{SA+3}], s{t[0]} offen")
        p(f"s_lshl_b32 s{t[0]}, s{sJ}, 8"); p(f"s_add_u32 s{t[0]}, s{t[0]}, {L.MODP + 5*2048}")
        for part in range(8):
            self.vm(f"buffer_load_dword v{GP+part}, v{vL4}, {W}, s{t[0]} offen sc1")
            if part < 7: p(f"s_add_u32 s{t[0]}, s{t[0]}, 12288")
        for k in range(112): p(f"v_mov_b32 v{acc+k}, 0")
        for x in range(1, 4):
            p(f"s_add_u32 s{t[0]}, s{sWAVE}, {x}"); p(f"s_and_b32 s{t[0]}, s{t[0]}, 3"); p(f"s_mul_i32 s{t[0]}, s{t[0]}, {21*1024}")
            p(f"s_add_u32 s{t[0]}, s{t[0]}, {(x-1)*7*1024}"); p(f"v_add_u32 v{va[x-1]}, s{t[0]}, v{vL16}")
        p(f"v_min_u32 v{pv+1}, 7, v1"); p(f"v_lshlrev_b32 v{pv+1}, 7, v{pv+1}")
        p(f"s_lshl_b32 s{t[2]}, s{sJ}, 12"); p(f"s_lshl_b32 s{t[1]}, s{sWAVE}, 10"); p(f"s_add_u32 s{t[2]}, s{t[2]}, s{t[1]}"); p(f"s_add_u32 s{t[2]}, s{t[2]}, {L.F4}")
        zb = sU[0]
        p(f"s_mul_i32 s{zb}, s{sJ}, {L.ZSTR}"); p(f"s_mul_i32 s{t[1]}, s{sWAVE}, {16*7168}"); p(f"s_add_u32 s{zb}, s{zb}, s{t[1]}")
        p(f"s_add_u32 s{zb}, s{zb}, {L.Z2N}")
        self.poll([f"buffer_load_dword v{pv}, v{pv+1}, {W}, s{t[2]} offen sc1"], [pv], sE, "s4")
        self.stamp("S4 passed")
        def zload(ks, ft):
            p(f"s_add_u32 s{t[0]}, s{zb}, {ks*7168 + (ft>>2)*4096}")
            self.vm(f"buffer_load_dwordx4 {vr(ZB[ks%RING]+4*ft,4)}, v{vL16}, {W}, s{t[0]} offen offset:{(ft&3)*1024} sc1", ('z', ks, ft))
        TAIL = RING
        order = [(ks, ft) for ks in range(16 - TAIL) for ft in range(7)] + [(ks, ft) for ft in range(7) for ks in range(16 - TAIL, 16)]
        nl = 0
        consumed = set()
        def can_issue(k): return k < len(order) and (order[k][0] < RING or (order[k][0] - RING, order[k][1]) in consumed)
        while can_issue(nl): zload(*order[nl]); nl += 1
        for w in (4, 2, 1):
            for k in range(w): p(f"v_add_f32 v{GP+k}, v{GP+k}, v{GP+k+w}")
        self.rnd(GP)
        p(f"s_lshl_b32 s{t[1]}, s{sWAVE}, 8"); p(f"s_add_u32 s{t[1]}, s{t[1]}, {L_GB}"); p(f"v_add_u32 v{vTMP}, s{t[1]}, v{vL4}")
        self.ds(f"ds_write_b32 v{vTMP}, v{GP}")
        p(f"v_lshlrev_b32 v{vbs}, 16, v{vbs}")
        pend = []
        for (ks, ft) in order:
            self.wait(vm=('z', ks, ft))
            for x in range(4):
                p(mfma(acc + 16 * ft + 4 * x, vr(ZB[ks % RING] + 4 * ft, 4), ar(16 * ks + 4 * x, 4)))
                if pend and x in (1, 2, 3): pend.pop(0)()
            consumed.add((ks, ft))
            while can_issue(nl): zload(*order[nl]); nl += 1
            if ks == 15:
                pend += [None] * 0
                pend_new = [lambda x=x, ft=ft: self.ds(f"ds_write_b128 v{va[x-1]}, {vr(acc+16*ft+4*x,4)} offset:{ft*1024}") for x in range(1, 4)]
                pend += [lambda: None] * 3 + pend_new
        self.stamp("gemm2")
        while pend: pend.pop(0)()
        p(f"s_mul_i32 s{t[0]}, s{sWAVE}, {21*1024}"); p(f"v_add_u32 v{va[0]}, s{t[0]}, v{vL16}")
        p(f"s_lshl_b32 s{t[0]}, s{sWAVE}, 9"); p(f"s_add_u32 s{t[0]}, s{t[0]}, {L_Z1}"); p(f"v_add_u32 v{va[1]}, s{t[0]}, v{vL8}")
        Z1 = ZB[0]; ZU = ZB[1]; UP = ZB[2]
        p(f"s_mul_i32 s{t[0]}, s{sI}, {L.USTR}"); p(f"s_mul_i32 s{t[1]}, s{sWAVE}, {28*1024}"); p(f"s_add_u32 s{t[0]}, s{t[0]}, s{t[1]}"); p(f"s_add_u32 s{t[0]}, s{t[0]}, {L.U}")
        p(f"s_mov_b32 s{sU[1]}, s{t[0]}")
        p(f"s_mul_i32 s{t[1]}, s{sJ}, 3072"); p(f"s_add_u32 s{t[1]}, s{t[1]}, s{t[0]}")
        p(f"s_lshr_b32 s{t[2]}, s{sJ}, 1"); p(f"s_lshl_b32 s{t[2]}, s{t[2]}, 10"); p(f"s_add_u32 s{t[2]}, s{t[2]}, s{t[0]}"); p(f"s_add_u32 s{t[2]}, s{t[2]}, {24*1024}")
        p(f"s_and_b32 s{t[3]}, s{sJ}, 1"); p(f"s_lshl_b32 s{t[3]}, s{t[3]}, 3"); p(f"s_add_u32 s{t[2]}, s{t[2]}, s{t[3]}")
        self.barrier()
        def rreads(ft):
            for x in range(1, 4): self.ds(f"ds_read_b128 {vr(acc+16*ft+4*x,4)}, v{va[0]} offset:{((x-1)*7+ft)*1024}", ('r', ft))
            self.ds(f"ds_read_b64 {vr(Z1+2*ft,2)}, v{va[1]} offset:{ft*2048}", ('r', ft))
        rreads(0); rreads(1); rreads(2)
        bs = vbs & 1
        for ft in range(7):
            if ft + 3 < 7: rreads(ft + 3)
            self.wait(ds=('r', ft))
            a = acc + 16 * ft; zu = ZU + 4 * (ft & 1)
            for o in (0, 2): p(f"v_pk_add_f32 {vr(a+o,2)}, {vr(a+o,2)}, {vr(a+4+o,2)}")
            for o in (0, 2): p(f"v_pk_add_f32 {vr(a+8+o,2)}, {vr(a+8+o,2)}, {vr(a+12+o,2)}")
            self.unpack(zu, zu + 1, Z1 + 2 * ft); self.unpack(zu + 2, zu + 3, Z1 + 2 * ft + 1)
            for o in (0, 2): p(f"v_pk_add_f32 {vr(a+o,2)}, {vr(a+o,2)}, {vr(vbs&~1,2)} op_sel:[0,{bs}] op_sel_hi:[1,{bs}]")
            for o in (0, 2): p(f"v_pk_add_f32 {vr(a+o,2)}, {vr(a+o,2)}, {vr(a+8+o,2)}")
            for o in (0, 2): p(f"v_pk_mul_f32 {vr(a+o,2)}, {vr(a+o,2)}, {vr(zu+o,2)}")
            p(f"v_cvt_pk_bf16_f32 v{UP+2*ft}, v{a}, v{a+1}"); p(f"v_cvt_pk_bf16_f32 v{UP+2*ft+1}, v{a+2}, v{a+3}")
            if ft in (1, 3, 5): self.vm(f"buffer_store_dwordx4 {vr(UP+2*(ft-1),4)}, v{vL16}, {W}, s{t[1]} offen offset:{(ft>>1)*1024} sc1", 'ust')
            if ft == 6: self.vm(f"buffer_store_dwordx2 {vr(UP+12,2)}, v{vL16}, {W}, s{t[2]} offen sc1", 'ust')
        self.stamp("u stored")

    def phase4(self):
        p = self.p; t = sT
        V = Alloc(V0, PV_XRES, 'v')
        vd = V(); pv = V(2); vA2 = V()
        UF = V(112, 4); acc = V(16, 4); GB = V(16, 4); FB = [V(16, 4), V(16, 4), V(16, 4)]
        self.srd(SC, P_OUT, 2097152)
        p(f"s_mul_i32 s{t[3]}, s{sJ}, {112*1024}"); p(f"s_add_u32 s{t[3]}, s{t[3]}, {L.WOUT}"); p(f"s_lshl_b32 s{t[2]}, s{sWAVE}, 10"); p(f"s_add_u32 s{t[3]}, s{t[3]}, s{t[2]}")
        def dma(ks):
            p(f"s_add_u32 s{t[4]}, s{t[3]}, {ks*4096}"); p(f"s_add_u32 m0, s{t[2]}, {ks*4096}")
            self.vm(f"buffer_load_dwordx4 v{vL16}, {W}, s{t[4]} offen sc1 lds", 'dma')
        early = [ks for ks in range(28) if ks * 4096 >= 84 * 1024]
        for ks in early: dma(ks)
        p(f"s_lshl_b32 s{t[0]}, s{sI}, 3"); p(f"s_add_u32 s{t[0]}, s{t[0]}, s{sJ}"); p(f"s_lshl_b32 s{t[0]}, s{t[0]}, 7"); p(f"s_add_u32 s{t[0]}, s{t[0]}, {L.F5}")
        p(f"s_lshl_b32 s{t[1]}, s{sWAVE}, 8"); p(f"s_add_u32 s{t[1]}, s{t[1]}, {L_GB}"); p(f"v_lshlrev_b32 v{vTMP}, 4, v{vH}"); p(f"v_add_u32 v{vTMP}, s{t[1]}, v{vTMP}")
        for dt in range(4): self.ds(f"ds_read_b128 {vr(GB+4*dt,4)}, v{vTMP} offset:{64*dt}")
        self.wait(vm='ust')
        self.barrier()
        lab = p.newlabel("L_f5")
        p(f"s_cmp_eq_u32 s{sWAVE}, 0"); p(f"s_cbranch_scc0 {lab}")
        self.lane0_store(sE, t[0])
        p.label(lab)
        self.stamp("F5 set")
        for ks in range(28):
            if ks not in early: dma(ks)
        for k in range(16): p(f"v_mov_b32 v{acc+k}, 0")
        p(f"v_add_u32 v{vA2}, 65536, v{vL16}")
        p(f"v_lshlrev_b32 v{vd}, 10, v{vN}"); p(f"v_and_b32 v{vTMP}, 1, v{vH}"); p(f"v_lshl_add_u32 v{vd}, v{vTMP}, 5, v{vd}")
        p(f"v_lshrrev_b32 v{vTMP}, 1, v{vH}"); p(f"v_lshl_add_u32 v{vd}, v{vTMP}, 4, v{vd}")
        p(f"v_min_u32 v{pv+1}, 7, v1"); p(f"v_lshlrev_b32 v{pv+1}, 7, v{pv+1}")
        p(f"s_lshl_b32 s{t[0]}, s{sI}, 10"); p(f"s_add_u32 s{t[0]}, s{t[0]}, {L.F5}")
        self.poll([f"buffer_load_dword v{pv}, v{pv+1}, {W}, s{t[0]} offen sc1"], [pv], sE, "s5")
        self.stamp("S5 passed")
        def uload(ks):
            self.vm(f"buffer_load_dwordx4 {vr(UF+4*ks,4)}, v{vL16}, {W}, s{sU[1]} offen offset:{(ks&3)*1024} sc1", ('u', ks))
            if ks % 4 == 3 and ks < 27: p(f"s_add_u32 s{sU[1]}, s{sU[1]}, 4096")
        LEAD = self.o.get('ulead', 10)
        for ks in range(LEAD): uload(ks)
        p("s_barrier")
        def aread(ks, dt): self.ds(f"ds_read_b128 {vr(FB[ks%3]+4*dt,4)}, v{vL16 if ks < 16 else vA2} offset:{(ks&15)*4096 + dt*1024}", ('a', ks, dt))
        for ks in range(2):
            for dt in range(4): aread(ks, dt)
        for ks in range(28):
            self.wait(vm=('u', ks))
            for dt in range(4):
                self.wait(ds=('a', ks, dt))
                p(mfma(acc + 4 * dt, vr(FB[ks % 3] + 4 * dt, 4), vr(UF + 4 * ks, 4)))
                if ks + 2 < 28: aread(ks + 2, dt)
            if ks + LEAD < 28: uload(ks + LEAD)
        self.stamp("gemm3")
        X = FB[0]; O = FB[1]
        for dt in range(4):
            self.unpack(X + 4 * dt, X + 4 * dt + 1, PV_XRES + 2 * dt); self.unpack(X + 4 * dt + 2, X + 4 * dt + 3, PV_XRES + 2 * dt + 1)
        p(f"s_lshl_b32 s{t[0]}, s{sI}, 16"); p(f"s_lshl_b32 s{t[1]}, s{sWAVE}, 14"); p(f"s_add_u32 s{t[0]}, s{t[0]}, s{t[1]}")
        p(f"s_lshl_b32 s{t[1]}, s{sJ}, 7"); p(f"s_add_u32 s{t[0]}, s{t[0]}, s{t[1]}")
        for k in range(8): p(f"v_pk_fma_f32 {vr(X+2*k,2)}, {vr(acc+2*k,2)}, {vr(GB+2*k,2)}, {vr(X+2*k,2)}")
        for k in range(8): p(f"v_cvt_pk_bf16_f32 v{O+k}, v{X+2*k}, v{X+2*k+1}")
        for pp in range(2):
            b = O + 4 * pp
            p(f"v_permlane16_swap_b32 v{b}, v{b+2}"); p(f"v_permlane16_swap_b32 v{b+1}, v{b+3}")
            p(f"buffer_store_dwordx4 {vr(b,4)}, v{vd}, s[{SC}:{SC+3}], s{t[0]} offen offset:{64*pp}")

    def finish(self):
        p = self.p
        lab = p.newlabel("L_ep")
        p("s_cmp_eq_u32 s2, 0"); p(f"s_cbranch_scc0 {lab}")
        p(f"s_cmp_eq_u32 s{sWAVE}, 0"); p(f"s_cbranch_scc0 {lab}")
        p(f"s_mov_b32 s{sT[0]}, {L.EPOCH}")
        self.lane0_store(sE, sT[0])
        p.label(lab)
        self.stamp("end")
        self.flush_stamps()
        p.label("L_end"); p("s_endpgm")

    def build(self, listform=True):
        self.prologue(); self.phase0(); self.phase1(); self.phase2(); self.phase3(); self.phase4(); self.finish()
        self.p.fix_hazards()
        hdr = open("adaLN_cond__ssm_conv_h3__mixer_gmlp__prompt.s.ref").read().split("; Override")[0]
        k = f"kernel={NAME} " if listform else ""
        hdr += f"; @launch {k}grid=(256,1,1) block=(256,1,1) lds={LDS_BYTES}\n.amdgcn_target \"amdgcn-amd-amdhsa--gfx950\"\n"
        return hdr + kernel_header(NAME) + self.p.text() + kernel_desc(NAME, 256, 100, 256)

if __name__ == "__main__":
    import argparse, json
    ap = argparse.ArgumentParser(); ap.add_argument("--prof", action="store_true")
    ap.add_argument("-o", default="f.s"); ap.add_argument("--xmap", default="8x4"); ap.add_argument("--opt", default="{}")
    ap.add_argument("--plain", action="store_true")
    a = ap.parse_args()
    open(a.o, "w").write(G(a.prof, a.xmap, json.loads(a.opt)).build(not a.plain))
```

```python
MB = 1 << 20
EPOCH = 0
C2   = 16384
C1B  = C2 + 16384
C1C  = C1B + 16384
F1   = 65536
F1B  = F1 + 65536
F4   = F1B + 65536
F5   = F4 + 32768
F6   = (1 << 18) + 131072
ST1  = 1 << 18
MODP = ST1 + 16384
ST3  = 1 << 19
PROF = 3 << 18
GAP = 65536
KVR  = 1 * MB
XT   = KVR + 2 * MB + GAP
X1T  = XT + 2 * MB + GAP
WIN  = X1T + 2 * MB + GAP
Z2N  = 9 * MB
ZSTR = 64 * 7168 + 1024
U    = 13 * MB
USTR = 112 * 1024 + 1024
WOUT = 17 * MB
WSP  = 18 * MB
WSTR = 262144 + 1024
WS_SIZE = 27 * MB
OOB = 0x40000000
assert WIN + 112 * 16384 <= Z2N and Z2N + 8 * ZSTR <= U and U + 32 * USTR <= WOUT and WSP + 32 * WSTR <= WS_SIZE
holes = [0xF8000, XT - GAP, X1T - GAP, WIN - GAP, Z2N - 1024, U - 1024, WOUT - 1024, WSP - 1024, WS_SIZE - 1024]
holes += [Z2N + j * ZSTR + 64 * 7168 for j in range(8)] + [U + i * USTR + 112 * 1024 for i in range(32)] + [WSP + i * WSTR + 262144 for i in range(32)]
def page_holes(pg=2 * MB):
    out = []
    for k in range((WS_SIZE + pg - 1) // pg):
        c = [h for h in holes if k * pg <= h < (k + 1) * pg]
        assert c, k
        out.append(c[0])
    return out
```

```python
import sys
from asm import *
import layout as L

NAME = "adaLN_cond__ssm_conv_h3__mixer_gmlp__prompt_kernel"
P_Q, P_K, P_V, P_SH, P_SSM, P_D, P_BX, P_WIN, P_WSP, P_BSP, P_WOUT, P_C, P_WMOD, P_OUT, P_DBG, P_WS = range(16)
def ptr(p): return 4 + 2 * p
WS = 36
SA, SB, SC, SD = 40, 44, 48, 52
sWAVE, sE, sI, sJ = 56, 57, 58, 59
sT = list(range(60, 80))
sSTAMP = 80
sX = 84
s4096 = 86
sD0 = 87
sU = list(range(88, 100))
SPIN_LIMIT = 200000
W = f"s[{WS}:{WS+3}]"

vTMP, vTMP2, vZ, vL16, vN, vH, vL8, vL4 = 2, 3, 4, 5, 6, 7, 8, 9
V0 = 10
PV_CS = 214
PV_XRES = 246
KC_STRIDE = 4384
KC = 0
KVL = 2 * 8 * KC_STRIDE
KVL_STRIDE = 6400
L_WST = 83968
L_FRG = 116736
L_TR = 100352
XA_FR = 1056
L_XA = 0
L_XRES = 64 * XA_FR
L_STP = 129024
L_ST2 = L_STP + 2048
L_ZP = L_ST2 + 2048
L_ST3 = L_ZP + 2048
L_CB = L_ST3 + 2048
L_AUG = L_CB + 2048
L_Z1 = L_AUG + 2048
L_GB = L_Z1 + 16384
LDS_BYTES = L_GB + 1024

def mfma(d, a, b): return f"v_mfma_f32_16x16x32_bf16 {vr(d,4)}, {a}, {b}, {vr(d,4)}"

class G:
    def __init__(self, prof=False, xmap='8x4', opt=None):
        self.p = Prog(); self.prof = prof; self.xmap = xmap
        self.nstamp = 0
        self.vmq = []; self.dsq = []
        self.o = dict(pd=4, pre_arrive=0)
        self.o.update(opt or {})

    def vm(self, text, tag=None): self.p(text); self.vmq.append(tag)
    def ds(self, text, tag=None): self.p(text); self.dsq.append(tag)
    def _cnt(self, q, tags):
        if not isinstance(tags, (list, tuple, set)) or isinstance(tags, tuple): tags = [tags]
        last = -1
        for k, x in enumerate(q):
            if x in tags: last = k
        return None if last < 0 else len(q) - 1 - last
    def wait(self, vm=None, ds=None):
        parts = []
        if vm is not None:
            n = 0 if vm == 'all' else self._cnt(self.vmq, vm)
            if n is not None:
                parts.append(f"vmcnt({min(n,63)})"); n = min(n, 63); self.vmq = self.vmq[len(self.vmq) - n:] if n else []
        if ds is not None:
            n = 0 if ds == 'all' else self._cnt(self.dsq, ds)
            if n is not None:
                parts.append(f"lgkmcnt({min(n,15)})"); n = min(n, 15); self.dsq = self.dsq[len(self.dsq) - n:] if n else []
        if parts: self.p("s_waitcnt " + " ".join(parts))
    def barrier(self): self.wait(ds='all'); self.p("s_barrier")

    def srd(self, s, p_idx, size):
        p = self.p
        p(f"s_mov_b32 s{s}, s{ptr(p_idx)}"); p(f"s_mov_b32 s{s+1}, s{ptr(p_idx)+1}")
        p(f"s_mov_b32 s{s+2}, {size}"); p(f"s_mov_b32 s{s+3}, 0x20000")

    def stamp(self, name=""):
        if not self.prof: return
        p = self.p; n = self.nstamp; self.nstamp += 1
        lab = p.newlabel("L_ns")
        p(f"s_memrealtime s[{sSTAMP}:{sSTAMP+1}]"); p("s_waitcnt lgkmcnt(0)")
        p(f"v_writelane_b32 v255, s{sSTAMP}, {n}")

    def flush_stamps(self):
        if not self.prof: return
        p = self.p
        lab = p.newlabel("L_fs")
        p(f"s_lshl_b32 s{sT[0]}, s2, 10"); p(f"s_lshl_b32 s{sT[1]}, s{sWAVE}, 8"); p(f"s_add_u32 s{sT[0]}, s{sT[0]}, s{sT[1]}"); p(f"s_add_u32 s{sT[0]}, s{sT[0]}, {L.PROF}")
        p(f"v_writelane_b32 v255, s{sSTAMP+2}, 63")
        p(f"buffer_store_dword v255, v{vL4}, {W}, s{sT[0]} offen")
        if self.o.get('dbg'):
            sel = self.o['dbg']
            self.srd(SA, P_DBG, 256)
            p(f"v_mov_b32 v10, 0")
            for k, st in enumerate(sel):
                p(f"v_readlane_b32 s{sT[2]}, v255, {st}"); p(f"s_sub_u32 s{sT[3]}, s{sT[2]}, s{sSTAMP+2}"); p(f"s_cmp_eq_u32 s{sT[2]}, 0"); p(f"s_cselect_b32 s{sT[3]}, 0, s{sT[3]}")
                p(f"v_writelane_b32 v10, s{sT[3]}, {k}")
            p("s_mov_b64 exec, 0xffff")
            p(f"buffer_atomic_umax v10, v{vL4}, s[{SA}:{SA+3}], 0 offen")
            p("s_mov_b64 exec, -1")

    def lane0_store(self, val_s, soff, atomic=False):
        p = self.p
        p(f"v_mov_b32 v{vTMP}, " + ("1" if atomic else f"s{val_s}")); p("s_mov_b64 exec, 1")
        p(f"{'buffer_atomic_add' if atomic else 'buffer_store_dword'} v{vTMP}, v{vZ}, {W}, s{soff} offen sc1")
        p("s_mov_b64 exec, -1")

    def arrive(self, base, st):
        p = self.p
        p(f"s_and_b32 s{st}, s2, 7"); p(f"s_lshl_b32 s{st}, s{st}, 7"); p(f"s_add_u32 s{st}, s{st}, {base}")
        p(f"v_mov_b32 v{vTMP}, 1"); p(f"v_lshlrev_b32 v{vTMP2}, 10, v1"); p("s_mov_b64 exec, 0xffff")
        p(f"buffer_atomic_add v{vTMP}, v{vTMP2}, {W}, s{st} offen sc1")
        p("s_mov_b64 exec, -1")

    def cnt_poll_setup(self, base, vaddr, sbase, starget, n):
        p = self.p
        p(f"s_lshr_b32 s{sbase}, s2, 3"); p(f"s_and_b32 s{sbase}, s{sbase}, 15"); p(f"s_lshl_b32 s{sbase}, s{sbase}, 10"); p(f"s_add_u32 s{sbase}, s{sbase}, {base}")
        p(f"s_lshl_b32 s{starget}, s{sE}, 7"); p(f"s_add_u32 s{starget}, s{starget}, {n}")
        p(f"v_min_u32 v{vaddr}, 7, v1"); p(f"v_lshlrev_b32 v{vaddr}, 7, v{vaddr}")

    def poll(self, loads, check_regs, target_s, tag, first_issued=None):
        p = self.p
        lp = p.newlabel("L_poll" + tag); chk = p.newlabel("L_pc" + tag); done = p.newlabel("L_pd" + tag)
        p(f"s_mov_b32 s{sT[18]}, 0")
        if first_issued is not None:
            self.wait(vm=first_issued); p(f"s_branch {chk}")
        p.label(lp)
        for x in loads: p(x)
        p("s_waitcnt vmcnt(0)")
        p.label(chk)
        p(f"v_xor_b32 v{vTMP}, s{target_s}, v{check_regs[0]}")
        for r in check_regs[1:]:
            p(f"v_xor_b32 v{vTMP2}, s{target_s}, v{r}"); p(f"v_or_b32 v{vTMP}, v{vTMP}, v{vTMP2}")
        p(f"v_cmp_ne_u32 vcc, 0, v{vTMP}")
        p(f"s_cbranch_vccz {done}")
        p(f"s_add_u32 s{sT[18]}, s{sT[18]}, 1"); p(f"s_cmp_gt_u32 s{sT[18]}, {SPIN_LIMIT}"); p(f"s_cbranch_scc1 {done}")
        p(f"s_sleep {self.o.get('sleep', 2)}")
        p(f"s_branch {lp}")
        p.label(done)
        if first_issued is None: self.vmq = []

    def allreduce(self, regs, tmp):
        p = self.p
        for mod in ("quad_perm:[1,0,3,2]", "quad_perm:[2,3,0,1]", "row_half_mirror", "row_mirror"):
            for r in regs: p(f"v_add_f32_dpp v{r}, v{r}, v{r} {mod} row_mask:0xf bank_mask:0xf")
        for sw in ("v_permlane16_swap_b32", "v_permlane32_swap_b32"):
            for r, t in zip(regs, tmp): p(f"v_mov_b32 v{t}, v{r}")
            for r, t in zip(regs, tmp): p(f"{sw} v{r}, v{t}")
            for r, t in zip(regs, tmp): p(f"v_add_f32 v{r}, v{r}, v{t}")

    def unpack(self, lo, hi, src):
        self.p(f"v_lshlrev_b32 v{lo}, 16, v{src}"); self.p(f"v_and_b32 v{hi}, 0xffff0000, v{src}")

    def rnd(self, r):
        self.p(f"v_cvt_pk_bf16_f32 v{r}, v{r}, v{r}"); self.p(f"v_lshlrev_b32 v{r}, 16, v{r}")

    def mix(self, main, bg, every=1, start=0):
        bi = 0
        for k, m in enumerate(main):
            m()
            if k >= start and (k - start) % every == every - 1 and bi < len(bg):
                bg[bi](); bi += 1
        while bi < len(bg): bg[bi](); bi += 1

    def prologue(self):
        p = self.p; t = sT
        p.label("L_start")
        if self.prof: p(f"s_memrealtime s[{sSTAMP+2}:{sSTAMP+3}]")
        p("s_cmp_ge_u32 s2, 256"); p("s_cbranch_scc1 L_end")
        p("s_load_dwordx16 s[4:19], s[0:1], 0"); p("s_load_dwordx16 s[20:35], s[0:1], 64")
        p("v_and_b32 v1, 63, v0"); p(f"v_lshrrev_b32 v{vTMP}, 6, v0"); p(f"v_readfirstlane_b32 s{sWAVE}, v{vTMP}")
        if self.prof: p("v_mov_b32 v255, 0")
        p(f"v_mov_b32 v{vZ}, 0"); p(f"v_lshlrev_b32 v{vL16}, 4, v1"); p(f"v_and_b32 v{vN}, 15, v1"); p(f"v_lshrrev_b32 v{vH}, 4, v1")
        p(f"s_mov_b32 s{s4096}, 4096")
        p(f"s_lshr_b32 s{t[0]}, s2, 3"); p(f"s_lshl_b32 s{t[0]}, s{t[0]}, 16")
        p(f"s_and_b32 s{t[1]}, s2, 7"); p(f"s_lshl_b32 s{t[2]}, s{t[1]}, 7"); p(f"s_add_u32 s{t[0]}, s{t[0]}, s{t[2]}")
        p(f"s_and_b32 s{t[2]}, s{sWAVE}, 1"); p(f"s_lshl_b32 s{t[2]}, s{t[2]}, 6"); p(f"s_add_u32 s{t[0]}, s{t[0]}, s{t[2]}")
        self.vb = V0
        p(f"v_lshrrev_b32 v{vTMP}, 3, v1"); p(f"v_and_b32 v{vTMP2}, 7, v1")
        p(f"v_lshlrev_b32 v{V0}, 13, v{vTMP}"); p(f"v_lshl_add_u32 v{V0}, v{vTMP2}, 3, v{V0}"); p(f"v_add_u32 v{V0}, s{t[0]}, v{V0}")

    def common_scalars(self):
        p = self.p; t = sT
        p(f"v_lshlrev_b32 v{vL8}, 3, v1"); p(f"v_lshlrev_b32 v{vL4}, 2, v1")
        p(f"s_and_b32 s{t[0]}, s2, 7"); p(f"s_lshr_b32 s{t[1]}, s2, 3")
        if self.xmap == '8x4':
            p(f"s_lshr_b32 s{t[2]}, s{t[0]}, 1"); p(f"s_lshl_b32 s{t[2]}, s{t[2]}, 3"); p(f"s_and_b32 s{t[3]}, s{t[1]}, 7"); p(f"s_add_u32 s{sI}, s{t[2]}, s{t[3]}")
            p(f"s_and_b32 s{t[2]}, s{t[0]}, 1"); p(f"s_lshl_b32 s{t[2]}, s{t[2]}, 2"); p(f"s_lshr_b32 s{t[3]}, s{t[1]}, 3"); p(f"s_add_u32 s{sJ}, s{t[2]}, s{t[3]}")
        else:
            p(f"s_lshl_b32 s{t[2]}, s{t[0]}, 2"); p(f"s_and_b32 s{t[3]}, s{t[1]}, 3"); p(f"s_add_u32 s{sI}, s{t[2]}, s{t[3]}")
            p(f"s_lshr_b32 s{sJ}, s{t[1]}, 2")
        p(f"s_lshl_b32 s{sD0}, s{t[0]}, 6"); p(f"s_lshl_b32 s{t[1]}, s{t[1]}, 1"); p(f"s_add_u32 s{sD0}, s{sD0}, s{t[1]}")
        self.srd(WS, P_WS, L.WS_SIZE)
        p(f"s_load_dword s{sE}, s[{ptr(P_WS)}:{ptr(P_WS)+1}], {L.EPOCH}")

    def pretouch(self, v):
        p = self.p
        hs = L.page_holes()
        p(f"v_mov_b32 v{v}, {hs[0]}")
        for k, h in enumerate(hs[1:], 1):
            p(f"s_mov_b32 s{sT[17]}, {h}"); p(f"v_writelane_b32 v{v}, s{sT[17]}, {k}")
        self.vm(f"buffer_load_dword v{v}, v{v}, {W}, 0 offen sc1", 'pt')

    def epoch(self):
        self.p("s_waitcnt lgkmcnt(0)"); self.dsq = []
        self.p(f"s_mul_i32 s{sE}, s{sE}, 0x9E3779B1"); self.p(f"s_add_u32 s{sE}, s{sE}, 0x7F4A7C15")

    def phase0(self):
        p = self.p; t = sT; vb = self.vb
        xrole = p.newlabel("L_xrole"); self.join = p.newlabel("L_p0join")
        def ld2(dst, vaddr, srd, n, tag):
            so = "0" if n < 4 else f"s{s4096}"
            self.vm(f"buffer_load_dwordx2 {vr(dst,2)}, v{vaddr}, s[{srd}:{srd+3}], {so} offen offset:{(n%4)*1024}", tag)
        def tstore_addr(V, base, rev):
            vw_, vg_ = V(), V(); vr_ = V(4)
            p(f"s_lshl_b32 s{t[13]}, s{sWAVE}, 12"); p(f"s_add_u32 s{t[13]}, s{t[13]}, {L_TR}")
            p(f"v_lshrrev_b32 v{vTMP}, 3, v1"); p(f"v_and_b32 v{vTMP2}, 7, v1")
            p(f"v_lshlrev_b32 v{vg_}, 12, v{vTMP}"); p(f"v_lshl_add_u32 v{vg_}, v{vTMP2}, 4, v{vg_}")
            p(f"v_lshrrev_b32 v{vr_}, 5, v1"); p(f"v_xor_b32 v{vr_}, v{vr_}, v{vTMP2}"); p(f"v_lshlrev_b32 v{vr_}, 4, v{vr_}"); p(f"v_lshl_add_u32 v{vr_}, v{vTMP}, 7, v{vr_}")
            p(f"v_add_u32 v{vr_}, s{t[13]}, v{vr_}")
            for q in range(1, 4): p(f"v_xor_b32 v{vr_+q}, {32*q}, v{vr_}")
            if rev: p(f"v_xor_b32 v{vTMP}, 7, v{vTMP}")
            p(f"v_xor_b32 v{vTMP}, v{vTMP}, v{vTMP2}"); p(f"v_lshlrev_b32 v{vw_}, 9, v{vTMP2}"); p(f"v_lshl_add_u32 v{vw_}, v{vTMP}, 4, v{vw_}")
            p(f"v_add_u32 v{vw_}, s{t[13]}, v{vw_}")
            p(f"s_and_b32 s{t[14]}, s2, 7"); p(f"s_lshl_b32 s{t[14]}, s{t[14]}, 18")
            p(f"s_and_b32 s{t[16]}, s{sWAVE}, 1"); p(f"s_lshl_b32 s{t[16]}, s{t[16]}, 17"); p(f"s_add_u32 s{t[14]}, s{t[14]}, s{t[16]}")
            p(f"s_lshr_b32 s{t[15]}, s2, 3"); p(f"s_lshl_b32 s{t[15]}, s{t[15]}, 7")
            if rev: p(f"s_sub_u32 s{t[14]}, s{t[14]}, s{t[15]}"); p(f"s_add_u32 s{t[14]}, s{t[14]}, {base + 4096 - 128}")
            else: p(f"s_add_u32 s{t[14]}, s{t[14]}, s{t[15]}"); p(f"s_add_u32 s{t[14]}, s{t[14]}, {base}")
            for c in range(1, 4): p(f"s_add_u32 s{t[14+c]}, s{t[14]}, {32768*c}")
            return vw_, vr_, vg_
        def tstore(o, vr_, vg_, tag):
            self.wait(ds='all')
            for q in range(4): self.ds(f"ds_read_b128 {vr(o+4*q,4)}, v{vr_+q} offset:{1024*q}", ('t', q))
            for q in range(4):
                self.wait(ds=('t', q))
                self.vm(f"buffer_store_dwordx4 {vr(o+4*q,4)}, v{vg_}, {W}, s{t[14+q]} offen sc1", tag)
        p(f"s_cmp_ge_u32 s{sWAVE}, 2"); p(f"s_cbranch_scc1 {xrole}")
        V = Alloc(V0 + 1, 250, 'v')
        va = V()
        p(f"v_subrev_u32 v{va}, 3072, v{vb}")
        p(f"v_cmp_gt_u32 vcc, 1024, v{vb}"); p(f"v_mov_b32 v{vTMP}, {L.OOB}"); p(f"v_cndmask_b32 v{va}, v{va}, v{vTMP}, vcc")
        p(f"v_lshlrev_b32 v{vTMP2}, 5, v{vTMP2}"); p(f"s_and_b32 s{t[2]}, s2, 7"); p(f"s_lshl_b32 s{t[2]}, s{t[2]}, 9")
        p(f"s_lshl_b32 s{t[3]}, s{sWAVE}, 8"); p(f"s_add_u32 s{t[2]}, s{t[2]}, s{t[3]}")
        rk = V(22, 2); rv = V(16, 2); rsh = V(8, 2); D = V(32, 2); vs0 = V()
        p(f"v_subrev_u32 v{vs0}, 16, v{vL16}"); p(f"v_cmp_eq_u32 vcc, 0, v1"); p(f"v_cndmask_b32 v{vs0}, v{vs0}, v{vTMP}, vcc")
        p("s_waitcnt lgkmcnt(0)")
        self.stamp("kernarg")
        self.srd(SA, P_K, 2097152); ld2(rk + 6, vb, SA, 0, 'kv')
        self.srd(SB, P_V, 2097152); ld2(rv, vb, SB, 0, 'kv')
        self.srd(SD, P_SH, 4096)
        for q in range(2): self.vm(f"buffer_load_dwordx4 {vr(rsh+4*q,4)}, v{vTMP2}, s[{SD}:{SD+3}], s{t[2]} offen offset:{16*q}", 'kv')
        for n in range(1, 8): ld2(rk + 6 + 2 * n, vb, SA, n, 'kv'); ld2(rv + 2 * n, vb, SB, n, 'kv')
        for n in range(3): ld2(rk + 2 * n, va, SA, n, 'kv')
        self.common_scalars()
        if self.o.get('pt', 1): self.pretouch(V())
        self.srd(SC, P_SSM, 2097152)
        p(f"s_add_u32 s{t[12]}, s{sD0}, s{sWAVE}"); p(f"s_lshl_b32 s{t[12]}, s{t[12]}, 12")
        def ssm():
            for m in range(4):
                if m == 0: self.vm(f"buffer_load_dwordx4 {vr(D,4)}, v{vs0}, s[{SC}:{SC+3}], s{t[12]} offen", 'ssm')
                else: self.vm(f"buffer_load_dwordx4 {vr(D+8*m,4)}, v{vL16}, s[{SC}:{SC+3}], s{t[12]} offen offset:{1024*m-16}", 'ssm')
                self.vm(f"buffer_load_dwordx4 {vr(D+8*m+4,4)}, v{vL16}, s[{SC}:{SC+3}], s{t[12]} offen offset:{1024*m}", 'ssm')
        if not self.o.get('ssm_late', 0): ssm()
        self.stamp("start")
        vtw, vtr, vtg = tstore_addr(V, L.KVR, True)
        Kp = V(22, 2); Vp = V(16, 2); Wt = V(8, 2); acc = V(16, 2); o = V(16, 2)
        self.wait(vm='kv')
        self.stamp("kv landed")
        if self.o.get('ssm_late', 0): ssm()
        for g in range(2):
            for n in range(11): self.unpack(Kp + 2 * n, Kp + 2 * n + 1, rk + 2 * n + g)
            for n in range(8): self.unpack(Vp + 2 * n, Vp + 2 * n + 1, rv + 2 * n + g)
            sh = rsh + 4 * g
            self.unpack(Wt + 0, Wt + 2, sh + 0); self.unpack(Wt + 4, Wt + 6, sh + 1)
            self.unpack(Wt + 1, Wt + 3, sh + 2); self.unpack(Wt + 5, Wt + 7, sh + 3)
            for s in range(8): p(f"v_pk_mul_f32 {vr(acc+2*s,2)}, {vr(Kp+2*s,2)}, {vr(Wt+6,2)}")
            for j in (2, 1, 0):
                for s in range(8): p(f"v_pk_fma_f32 {vr(acc+2*s,2)}, {vr(Kp+2*(s+3-j),2)}, {vr(Wt+2*j,2)}, {vr(acc+2*s,2)}")
            for s in range(8): p(f"v_pk_mul_f32 {vr(acc+2*s,2)}, {vr(acc+2*s,2)}, {vr(Vp+2*s,2)}")
            for ch in range(2):
                for q in range(4): p(f"v_cvt_pk_bf16_f32 v{o+8*g+4*ch+q}, v{acc+2*(7-2*q)+ch}, v{acc+2*(6-2*q)+ch}")
                self.ds(f"ds_write_b128 v{vtw}, {vr(o+8*g+4*ch,4)} offset:{128*(2*g+ch)}")
        tstore(o, vtr, vtg, 'kvst')
        self.stamp("kv st issued")
        self.epoch()
        lab = p.newlabel("L_cinit")
        p("s_cmp_lt_u32 s2, 8"); p(f"s_cbranch_scc0 {lab}")
        p(f"s_lshl_b32 s{t[3]}, s{sE}, 7"); p(f"s_lshl_b32 s{t[4]}, s2, 7"); p(f"s_add_u32 s{t[4]}, s{t[4]}, {L.C2}")
        p(f"v_mov_b32 v{vTMP}, s{t[3]}"); p(f"v_lshlrev_b32 v{vTMP2}, 10, v1"); p("s_mov_b32 exec_hi, 0xffff")
        p(f"buffer_store_dword v{vTMP}, v{vTMP2}, {W}, s{t[4]} offen sc1")
        p("s_mov_b64 exec, -1"); p("s_waitcnt vmcnt(0)")
        p.label(lab)
        p(f"s_lshl_b32 s{t[3]}, s2, 8"); p(f"s_lshl_b32 s{t[4]}, s{sWAVE}, 7"); p(f"s_add_u32 s{t[3]}, s{t[3]}, s{t[4]}"); p(f"s_add_u32 s{t[3]}, s{t[3]}, {L.F1}")
        vc = V(); D1 = Kp; E = Kp + 8; E1 = Vp
        p(f"s_mul_i32 s{t[5]}, s{sWAVE}, {8*KC_STRIDE}"); p(f"s_add_u32 s{t[5]}, s{t[5]}, {KC + 48}"); p(f"v_add_u32 v{vc}, s{t[5]}, v{vL16}")
        self.wait(vm='ssm')
        for m in range(4):
            d = D + 8 * m; o2 = 8 * (m & 1) * 0
            for i in range(7): p(f"v_alignbit_b32 v{E+i}, v{d+i+1}, v{d+i}, 16")
            for i in range(6): p(f"v_alignbit_b32 v{E1+i}, v{d+i+2}, v{d+i+1}, 16")
            for i in range(6): p(f"v_mov_b32 v{D1+i}, v{d+i+1}")
            for j, r in enumerate((E, D1, E1, d + 2, E + 2, D1 + 2, E1 + 2, d + 4)):
                self.ds(f"ds_write_b128 v{vc}, {vr(r,4)} offset:{j*KC_STRIDE + 1024*m}")
            if m == self.o.get('f1_after', 1):
                self.wait(vm='kvst'); self.lane0_store(sE, t[3]); self.stamp("F1 set")

        Z = acc
        for k in range(4): p(f"v_mov_b32 v{Z+k}, 0")
        p(f"v_lshrrev_b32 v{vTMP}, 2, v1"); p(f"v_and_b32 v{vTMP}, 7, v{vTMP}"); p(f"v_mul_u32_u24 v{vTMP}, {KC_STRIDE}, v{vTMP}")
        p(f"v_and_b32 v{vTMP2}, 3, v1"); p(f"v_min_u32 v{vTMP2}, 2, v{vTMP2}"); p(f"v_lshl_add_u32 v{vTMP}, v{vTMP2}, 4, v{vTMP}")
        p(f"s_sub_u32 s{t[5]}, s{t[5]}, 48"); p(f"v_add_u32 v{vTMP}, s{t[5]}, v{vTMP}")
        self.ds(f"ds_write_b128 v{vTMP}, {vr(Z,4)}")
        p(f"s_mul_i32 s{t[5]}, s{sWAVE}, {KVL_STRIDE}"); p(f"s_add_u32 s{t[5]}, s{t[5]}, {KVL}"); p(f"v_add_u32 v{vTMP2}, s{t[5]}, v{vL16}")
        self.ds(f"ds_write_b128 v{vTMP2}, {vr(Z,4)} offset:5120"); self.ds(f"ds_write_b128 v{vTMP2}, {vr(Z,4)} offset:{6400-1024}")
        vkw, vf, pv = V(), V(), V(); rkv = D
        p(f"v_lshrrev_b32 v{vkw}, 2, v1"); p(f"v_add_u32 v{vkw}, v{vkw}, v1"); p(f"v_lshlrev_b32 v{vkw}, 4, v{vkw}"); p(f"v_add_u32 v{vkw}, s{t[5]}, v{vkw}")
        p(f"v_lshrrev_b32 v{vf}, 1, v1"); p(f"v_lshlrev_b32 v{vf}, 11, v{vf}"); p(f"v_and_b32 v{vTMP}, 1, v1"); p(f"v_lshl_add_u32 v{vf}, v{vTMP}, 7, v{vf}")
        p(f"s_and_b32 s{t[0]}, s2, 7"); p(f"s_lshl_b32 s{t[0]}, s{t[0]}, 8"); p(f"s_add_u32 s{t[0]}, s{t[0]}, {L.F1}")
        p(f"s_add_u32 s{t[1]}, s{t[12]}, {L.KVR}")
        self.stamp("ssm copies")
        p(f"s_cmp_eq_u32 s{sWAVE}, 0"); p(f"s_cbranch_scc0 {self.join}")
        self.poll([f"buffer_load_dword v{pv}, v{vf}, {W}, s{t[0]} offen sc1"], [pv], sE, "s1")
        self.stamp("S1 passed")
        self.wait(ds='all')
        p(f"s_add_u32 s{t[2]}, s{t[1]}, 4096")
        for m in range(8): self.vm(f"buffer_load_dwordx4 {vr(rkv+4*m,4)}, v{vL16}, {W}, s{t[1+(m>>2)]} offen offset:{1024*(m&3)} sc1", ('kvr', m))
        for m in range(8):
            self.wait(vm=('kvr', m)); self.ds(f"ds_write_b128 v{vkw}, {vr(rkv+4*m,4)} offset:{1280*(m&3) + KVL_STRIDE*(m>>2)}")
        p(f"s_branch {self.join}")
        p.label(xrole)
        self.vmq = []; self.dsq = []
        V = Alloc(V0 + 1, 250, 'v')
        sw = sU[0]
        p(f"s_and_b32 s{sw}, s{sWAVE}, 1")
        p(f"s_getpc_b64 s[{sX}:{sX+1}]")
        p.label("L_pc")
        p.raw(f"    s_sub_u32 s{sX}, s{sX}, L_pc-L_start\n    s_subb_u32 s{sX+1}, s{sX+1}, 0")
        p(f"s_lshr_b32 s{t[2]}, s2, 3"); p(f"s_and_b32 s{t[2]}, s{t[2]}, 3"); p(f"s_lshl_b32 s{t[2]}, s{t[2]}, 1"); p(f"s_add_u32 s{t[2]}, s{t[2]}, s{sw}"); p(f"s_lshl_b32 s{t[2]}, s{t[2]}, 13")
        vpf = V()
        p(f"v_lshlrev_b32 v{vpf}, 7, v1"); p(f"v_add_u32 v{vpf}, s{t[2]}, v{vpf}")
        p.raw(f"    v_min_u32 v{vpf}, L_end-L_start, v{vpf}")
        self.vm(f"global_load_dword v{vpf}, v{vpf}, s[{sX}:{sX+1}]", 'pf')
        rx = V(16, 2); rst = V(16, 2); rm = V(32, 2); rc = V(4, 2); vm_, vcq, vj, vo = V(), V(), V(), V()
        sCG, sKQ, sWI, sWO, sMD, y0, y1, y2, y3, sLB = sU[1:11]
        p(f"s_lshl_b32 s{t[3]}, s2, 13"); p(f"s_lshl_b32 s{t[4]}, s{sw}, 12"); p(f"s_add_u32 s{t[3]}, s{t[3]}, s{t[4]}")
        p(f"s_lshl_b32 s{t[6]}, s2, 1"); p(f"s_add_u32 s{t[6]}, s{t[6]}, s{sw}"); p(f"s_lshr_b32 s{sCG}, s{t[6]}, 3"); p(f"s_and_b32 s{sKQ}, s{t[6]}, 7")
        p(f"v_lshrrev_b32 v{vTMP}, 3, v1"); p(f"v_lshlrev_b32 v{vcq}, 4, v{vTMP}")
        p(f"v_mul_u32_u24 v{vm_}, {8*6144}, v{vTMP}"); p(f"v_and_b32 v{vTMP}, 7, v1"); p(f"v_lshl_add_u32 v{vm_}, v{vTMP}, 4, v{vm_}")
        p(f"s_mul_i32 s{sMD}, s{sKQ}, {64*6144}"); p(f"s_lshl_b32 s{t[7]}, s{sCG}, 7"); p(f"s_add_u32 s{sMD}, s{sMD}, s{t[7]}")
        p(f"s_cmp_ge_u32 s2, 192"); p(f"s_cselect_b32 s{sMD}, {L.OOB}, s{sMD}")
        p(f"s_lshl_b32 s{t[6]}, s{sKQ}, 7")
        p("s_waitcnt lgkmcnt(0)")
        self.srd(SC, P_Q, 2097152)
        for n in range(8): ld2(rx + 2 * n, vb, SC, n, 'x')
        for r in range(4): self.vm(f"buffer_load_dwordx4 {vr(rst+4*r,4)}, v{vL16}, s[{SC}:{SC+3}], s{t[3]} offen offset:{1024*r}", 'st')
        self.srd(SB, P_C, 1024); self.vm(f"buffer_load_dwordx4 {vr(rc,4)}, v{vcq}, s[{SB}:{SB+3}], s{t[6]} offen", 'c')
        self.srd(SA, P_WMOD, 512 * 6144)
        for n in range(8):
            self.vm(f"buffer_load_dwordx4 {vr(rm+4*n,4)}, v{vm_}, s[{SA}:{SA+3}], s{sMD} offen", ('m', n))
            if n < 7: p(f"s_add_u32 s{sMD}, s{sMD}, 6144")
        self.srd(SD, P_WIN, 512 * 3584); self.srd(SB, P_WOUT, 896 * 1024)
        p(f"v_lshrrev_b32 v{vj}, 1, v1"); p(f"v_lshlrev_b32 v{vo}, 10, v{vj}"); p(f"v_mul_u32_u24 v{vj}, 3584, v{vj}")
        p(f"v_and_b32 v{vTMP}, 1, v1"); p(f"v_lshl_add_u32 v{vj}, v{vTMP}, 4, v{vj}"); p(f"v_lshl_add_u32 v{vo}, v{vTMP}, 4, v{vo}")
        p(f"s_mul_i32 s{sLB}, s{sw}, 6144"); p(f"s_add_u32 s{sLB}, s{sLB}, {L_FRG}")
        p(f"s_and_b32 s{t[6]}, s2, 15"); p(f"s_lshr_b32 s{t[7]}, s2, 4"); p(f"s_mul_i32 s{t[7]}, s{t[7]}, 7"); p(f"s_lshl_b32 s{t[8]}, s{sw}, 2"); p(f"s_add_u32 s{t[7]}, s{t[7]}, s{t[8]}")
        p(f"s_mul_i32 s{y0}, s{t[6]}, {32*3584}"); p(f"s_lshl_b32 s{t[8]}, s{t[7]}, 5"); p(f"s_add_u32 s{y0}, s{y0}, s{t[8]}")
        for x in range(4):
            p(f"s_add_u32 s{t[10]}, s{y0}, {32*x}")
            if x == 3: p(f"s_cmp_eq_u32 s{sw}, 1"); p(f"s_cselect_b32 s{t[10]}, {L.OOB}, s{t[10]}")
            p(f"s_add_u32 m0, s{sLB}, {1024*x}"); self.vm(f"buffer_load_dwordx4 v{vj}, s[{SD}:{SD+3}], s{t[10]} offen lds", 'dma')
        p(f"s_lshl_b32 s{y2}, s{t[7]}, 14"); p(f"s_lshl_b32 s{t[8]}, s{t[6]}, 10"); p(f"s_add_u32 s{y2}, s{y2}, s{t[8]}"); p(f"s_add_u32 s{y2}, s{y2}, {L.WIN}")
        p(f"s_lshr_b32 s{t[6]}, s2, 3"); p(f"s_mul_i32 s{t[7]}, s{t[6]}, 21846"); p(f"s_lshr_b32 s{t[7]}, s{t[7]}, 16")
        p(f"s_lshl_b32 s{t[8]}, s{t[6]}, 5"); p(f"s_lshl_b32 s{t[7]}, s{t[7]}, 4"); p(f"s_add_u32 s{t[7]}, s{t[7]}, s{t[8]}")
        p(f"s_sub_u32 s{t[8]}, s{t[6]}, 24"); p(f"s_mul_i32 s{t[8]}, s{t[8]}, 224"); p(f"s_add_u32 s{t[8]}, s{t[8]}, 96")
        p(f"s_cmp_ge_u32 s{t[6]}, 24"); p(f"s_cselect_b32 s{t[7]}, s{t[8]}, s{t[7]}"); p(f"s_cselect_b32 s{t[8]}, {96*1024}, 0")
        p(f"v_cmp_lt_u32 vcc, 31, v1"); p(f"v_mov_b32 v{vTMP}, s{t[8]}"); p(f"v_cndmask_b32 v{vTMP}, 0, v{vTMP}, vcc"); p(f"v_add_u32 v{vo}, v{vo}, v{vTMP}")
        p(f"s_lshl_b32 s{y1}, s{t[7]}, 10"); p(f"s_and_b32 s{t[8]}, s2, 7"); p(f"s_lshl_b32 s{t[7]}, s{t[8]}, 7"); p(f"s_add_u32 s{y1}, s{y1}, s{t[7]}")
        p(f"s_lshl_b32 s{t[7]}, s{sw}, 6"); p(f"s_add_u32 s{y1}, s{y1}, s{t[7]}")
        p(f"s_mul_i32 s{y3}, s{t[8]}, 28"); p(f"s_add_u32 s{y3}, s{y3}, s{t[6]}"); p(f"s_lshl_b32 s{y3}, s{y3}, 12"); p(f"s_add_u32 s{y3}, s{y3}, {L.WOUT}")
        p(f"s_lshl_b32 s{t[7]}, s{sw}, 11"); p(f"s_add_u32 s{y3}, s{y3}, s{t[7]}")
        p(f"s_cmp_ge_u32 s2, 224"); p(f"s_cselect_b32 s{y1}, {L.OOB}, s{y1}"); p(f"s_cselect_b32 s{y3}, {L.OOB}, s{y3}")
        for x in range(2):
            p(f"s_add_u32 s{t[10]}, s{y1}, {32*x}")
            p(f"s_add_u32 m0, s{sLB}, {4096 + 1024*x}"); self.vm(f"buffer_load_dwordx4 v{vo}, s[{SB}:{SB+3}], s{t[10]} offen lds", 'dma')
        self.common_scalars()
        vtw, vtr, vtg = tstore_addr(V, L.XT, False)
        o = V(16, 2)
        p(f"s_mov_b32 s{t[18]}, 0x05040100"); p(f"s_mov_b32 s{t[19]}, 0x07060302")
        self.wait(vm='x')
        self.stamp("x: x landed")
        for c in range(4):
            for q in range(4): p(f"v_perm_b32 v{o+4*c+q}, v{rx+4*q+2+(c>>1)}, v{rx+4*q+(c>>1)}, s{t[18+(c&1)]}")
            self.ds(f"ds_write_b128 v{vtw}, {vr(o+4*c,4)} offset:{128*c}")
        tstore(o, vtr, vtg, None)
        self.wait(vm='c')
        X = V(32, 2); S = V(8, 2); Q = V(8, 2); T4 = V(4, 2); R = V(8, 2)
        for r in range(4):
            for q in range(4): self.unpack(X + 8 * r + 2 * q, X + 8 * r + 2 * q + 1, rst + 4 * r + q)
        for q in range(1, 4):
            for r in range(4):
                p(f"v_pk_add_f32 {vr(S+2*r,2)}, {vr(X+8*r if q == 1 else S+2*r,2)}, {vr(X+8*r+2*q,2)}")
        for r in range(4): p(f"v_add_f32 v{S+2*r}, v{S+2*r}, v{S+2*r+1}")
        self.allreduce([S + 2 * r for r in range(4)], [T4 + r for r in range(4)])
        for r in range(4): p(f"v_mul_f32 v{S+2*r}, {-1.0/512:.10g}, v{S+2*r}")
        for r in range(4):
            for q in range(4): p(f"v_pk_add_f32 {vr(X+8*r+2*q,2)}, {vr(X+8*r+2*q,2)}, {vr(S+2*r,2)} op_sel_hi:[1,0]")
        for q in range(4):
            for r in range(4):
                if q == 0: p(f"v_pk_mul_f32 {vr(Q+2*r,2)}, {vr(X+8*r,2)}, {vr(X+8*r,2)}")
                else: p(f"v_pk_fma_f32 {vr(Q+2*r,2)}, {vr(X+8*r+2*q,2)}, {vr(X+8*r+2*q,2)}, {vr(Q+2*r,2)}")
        for r in range(4): p(f"v_add_f32 v{Q+2*r}, v{Q+2*r}, v{Q+2*r+1}")
        self.allreduce([Q + 2 * r for r in range(4)], [T4 + r for r in range(4)])
        p(f"v_mov_b32 v{T4}, 1e-5"); p(f"v_mov_b32 v{T4+1}, {1.0/512:.10g}")
        for r in range(4): p(f"v_fma_f32 v{Q+2*r}, v{Q+2*r}, v{T4+1}, v{T4}")
        for r in range(4): p(f"v_rsq_f32 v{R+r}, v{Q+2*r}")
        for r in range(4): p(f"v_mul_f32 v{R+4+r}, v{S+2*r}, v{R+r}")
        p(f"s_lshl_b32 s{t[3]}, s2, 5"); p(f"s_lshl_b32 s{t[4]}, s{sw}, 4"); p(f"s_add_u32 s{t[3]}, s{t[3]}, s{t[4]}"); p(f"s_add_u32 s{t[3]}, s{t[3]}, {L.ST1}")
        p(f"s_add_u32 s{t[4]}, s{t[3]}, 8192")
        p("s_mov_b64 exec, 1")
        self.vm(f"buffer_store_dwordx4 {vr(R,4)}, v{vZ}, {W}, s{t[3]} offen sc1")
        self.vm(f"buffer_store_dwordx4 {vr(R+4,4)}, v{vZ}, {W}, s{t[4]} offen sc1")
        p("s_mov_b64 exec, -1")
        self.epoch()
        SV = S; E8 = Q; A = X; U8 = rx
        vma = V()
        for q in range(4): self.unpack(SV + 2 * q, SV + 2 * q + 1, rc + q)
        for k in range(8): p(f"v_mul_f32 v{E8+k}, {-1.4426950408889634:.10g}, v{SV+k}")
        for k in range(8): p(f"v_exp_f32 v{E8+k}, v{E8+k}")
        for k in range(8): p(f"v_add_f32 v{E8+k}, 1.0, v{E8+k}")
        for k in range(8): p(f"v_rcp_f32 v{E8+k}, v{E8+k}")
        for k in range(8): p(f"v_mul_f32 v{SV+k}, v{SV+k}, v{E8+k}")
        for q in range(4): p(f"v_cvt_pk_bf16_f32 v{E8+q}, v{SV+2*q}, v{SV+2*q+1}")
        for q in range(4): self.unpack(SV + 2 * q, SV + 2 * q + 1, E8 + q)
        p(f"v_and_b32 v{vTMP}, 7, v1"); p(f"v_lshlrev_b32 v{vTMP}, 5, v{vTMP}")
        p(f"v_and_b32 v{vTMP2}, 1, v{vH}"); p(f"v_lshl_add_u32 v{vTMP}, v{vTMP2}, 4, v{vTMP}")
        p(f"v_lshrrev_b32 v{vTMP2}, 1, v{vH}"); p(f"v_lshl_add_u32 v{vma}, v{vTMP2}, 3, v{vTMP}")
        p(f"s_mul_i32 s{sKQ}, s{sKQ}, 12288"); p(f"s_lshl_b32 s{t[4]}, s{sCG}, 8"); p(f"s_add_u32 s{sKQ}, s{sKQ}, s{t[4]}"); p(f"s_add_u32 s{sKQ}, s{sKQ}, {L.MODP}")
        p(f"s_cmp_ge_u32 s2, 192"); p(f"s_cselect_b32 s{sKQ}, {L.OOB}, s{sKQ}")
        self.stamp("x: stats done")
        for n in range(8):
            self.wait(vm=('m', n))
            uu = U8 + 8 * (n & 1)
            for q in range(4): self.unpack(uu + 2 * q, uu + 2 * q + 1, rm + 4 * n + q)
            s1 = n & 1
            for q in range(4):
                if n == 0: p(f"v_pk_mul_f32 {vr(A+2*q,2)}, {vr(uu+2*q,2)}, {vr(SV,2)} op_sel_hi:[1,0]")
                else: p(f"v_pk_fma_f32 {vr(A+2*q,2)}, {vr(uu+2*q,2)}, {vr(SV+(n&~1),2)}, {vr(A+2*q,2)} op_sel:[0,{s1},0] op_sel_hi:[1,{s1},1]")
        for k in range(8): p(f"v_add_f32_dpp v{A+k}, v{A+k}, v{A+k} row_ror:8 row_mask:0xf bank_mask:0xf")
        for k in range(4): p(f"v_permlane16_swap_b32 v{A+k}, v{A+4+k}")
        for k in range(4): p(f"v_add_f32 v{A+k}, v{A+k}, v{A+4+k}")
        for k in range(2): p(f"v_permlane32_swap_b32 v{A+k}, v{A+2+k}")
        for k in range(2): p(f"v_add_f32 v{A+k}, v{A+k}, v{A+2+k}")
        p("s_mov_b32 exec_lo, 0x00ff00ff"); p("s_mov_b32 exec_hi, 0x00ff00ff")
        self.vm(f"buffer_store_dwordx2 {vr(A,2)}, v{vma}, {W}, s{sKQ} offen sc1")
        p("s_mov_b64 exec, -1")
        self.stamp("x: mod done")
        F = rm
        p(f"v_add_u32 v{vTMP}, s{sLB}, v{vL8}")
        self.wait(vm='dma')
        for x in range(6):
            for q in range(2): self.ds(f"ds_read_b64_tr_b16 {vr(F+4*x+2*q,2)}, v{vTMP} offset:{x*1024+q*512}", ('f', x))
        for x in range(6):
            self.wait(ds=('f', x))
            if x < 4:
                p(f"s_add_u32 s{t[10]}, s{y2}, {16384*x}")
                if x == 3: p(f"s_cmp_eq_u32 s{sw}, 1"); p(f"s_cselect_b32 s{t[10]}, {L.OOB}, s{t[10]}")
                self.vm(f"buffer_store_dwordx4 {vr(F+4*x,4)}, v{vL16}, {W}, s{t[10]} offen sc1")
            else:
                self.vm(f"buffer_store_dwordx4 {vr(F+4*x,4)}, v{vL16}, {W}, s{y3} offen offset:{1024*(x-4)} sc1")
        self.stamp("x: frags done")
        p.label(self.join)
        self.vmq = []; self.dsq = ['x']

    def phase1(self):
        p = self.p; t = sT
        V = Alloc(V0, PV_CS, 'v')
        sCH, sHALF, sD, sCX, sCY, sXO0, sXO1, sKB, sY0, sY1, sY2, sY3 = sU[0:12]
        sXO = [sXO0, sXO1]
        L_XTL = L_TR; L_MSC = L_STP
        p(f"s_lshr_b32 s{sCH}, s{sWAVE}, 1"); p(f"s_and_b32 s{sHALF}, s{sWAVE}, 1"); p(f"s_add_u32 s{sD}, s{sD0}, s{sCH}")
        p(f"s_sub_u32 s{sCX}, 3, s{sHALF}"); p(f"s_mov_b32 s{sCY}, s{sHALF}")
        p(f"s_mul_i32 s{sKB}, s{sCH}, {KVL_STRIDE}"); p(f"s_add_u32 s{sKB}, s{sKB}, {KVL}")
        vA, vBX, vBY, vKX, vKY, vst, vg, vms, vSX, vSY, vXX, vXY, vj = (V() for _ in range(13))
        p(f"v_and_b32 v{vTMP}, 7, v1"); p(f"v_mul_u32_u24 v{vA}, {KC_STRIDE}, v{vTMP}")
        p(f"v_lshl_add_u32 v{vA}, v{vH}, 8, v{vA}")
        p(f"v_bfe_u32 v{vTMP}, v1, 3, 1"); p(f"v_lshl_add_u32 v{vA}, v{vTMP}, 4, v{vA}")
        p(f"s_mul_i32 s{t[5]}, s{sCH}, {8*KC_STRIDE}"); p(f"v_add_u32 v{vA}, s{t[5]}, v{vA}")
        p(f"v_lshlrev_b32 v{vTMP}, 2, v{vH}"); p(f"v_sub_u32 v{vTMP}, v{vTMP}, v{vN}"); p(f"v_add_u32 v{vTMP}, 63, v{vTMP}"); p(f"v_mul_u32_u24 v{vTMP}, 80, v{vTMP}")
        for sc, vb in ((sCX, vBX), (sCY, vBY)):
            p(f"s_mul_i32 s{t[5]}, s{sc}, 1280"); p(f"s_sub_u32 s{t[5]}, s{sKB}, s{t[5]}")
            p(f"v_add_u32 v{vb}, s{t[5]}, v{vTMP}")
        acc = V(16, 4)
        for k in range(16): p(f"v_mov_b32 v{acc+k}, 0")
        self.barrier()
        self.stamp("kv in LDS")
        pv = V(4); msc = V(4, 2); rx = V(8, 2); rr = V(16, 2); rm = V(16, 2)
        def su1():
            p(f"v_lshlrev_b32 v{vst}, 6, v{vN}"); p(f"v_and_b32 v{vTMP}, 1, v{vH}"); p(f"v_lshl_add_u32 v{vst}, v{vTMP}, 5, v{vst}")
            p(f"v_lshrrev_b32 v{vTMP}, 1, v{vH}"); p(f"v_lshl_add_u32 v{vst}, v{vTMP}, 4, v{vst}")
        def su2():
            p(f"v_mul_u32_u24 v{vTMP2}, 80, v{vN}"); p(f"v_lshl_add_u32 v{vTMP2}, v{vH}, 3, v{vTMP2}"); p(f"v_sub_u32 v{vTMP2}, 5064, v{vTMP2}")
            for sc, vk in ((sCX, vKX), (sCY, vKY)):
                p(f"s_mul_i32 s{t[5]}, s{sc}, 1280"); p(f"s_sub_u32 s{t[5]}, s{sKB}, s{t[5]}"); p(f"v_add_u32 v{vk}, s{t[5]}, v{vTMP2}")
        def su3():
            p(f"v_lshlrev_b32 v{vTMP}, 7, v{vN}"); p(f"v_lshl_add_u32 v{vTMP}, v{vH}, 4, v{vTMP}")
            for sc, vs in ((sCX, vSX), (sCY, vSY)):
                p(f"s_lshl_b32 s{t[4]}, s{sc}, 11"); p(f"s_add_u32 s{t[4]}, s{t[4]}, {L_WST}"); p(f"v_add_u32 v{vs}, s{t[4]}, v{vTMP}")
        def su4():
            p(f"v_lshlrev_b32 v{vTMP}, 6, v{vN}"); p(f"v_lshl_add_u32 v{vTMP}, v{vH}, 3, v{vTMP}"); p(f"s_lshl_b32 s{t[5]}, s{sCH}, 12")
            for sc, vs in ((sCX, vXX), (sCY, vXY)):
                p(f"s_lshl_b32 s{t[4]}, s{sc}, 10"); p(f"s_add_u32 s{t[4]}, s{t[4]}, s{t[5]}"); p(f"s_add_u32 s{t[4]}, s{t[4]}, {L_XTL}"); p(f"v_add_u32 v{vs}, s{t[4]}, v{vTMP}")
        def su5():
            p(f"s_lshl_b32 s{t[0]}, s{sD}, 12")
            for k, sc in enumerate((sCX, sCY)):
                p(f"s_lshl_b32 s{sXO[k]}, s{sc}, 10"); p(f"s_add_u32 s{sXO[k]}, s{sXO[k]}, s{t[0]}"); p(f"s_add_u32 s{sXO[k]}, s{sXO[k]}, {L.X1T}")
        def dload():
            self.srd(SA, P_D, 1024); p(f"s_lshl_b32 s{t[0]}, s{sD}, 1")
            self.vm(f"buffer_load_ushort v{msc+3}, v{vZ}, s[{SA}:{SA+3}], s{t[0]} offen", 'D')
        PD = self.o['pd']; NA, NB = PD + 6, PD + 1
        Ar = [V(4, 2) for _ in range(NA)]
        Br = [[V(4, 2) for _ in range(NB)] for _ in range(2)]
        kvv = V(8, 2)
        epi = p.newlabel("L_cepi"); bl = [p.newlabel("L_cw") for _ in range(4)]
        for w in range(1, 4): p(f"s_cmp_eq_u32 s{sWAVE}, {w}"); p(f"s_cbranch_scc1 {bl[w]}")
        st0 = self.nstamp
        nop = lambda: None
        for wv in range(4):
            half = wv & 1; roleA = wv < 2
            p.label(bl[wv])
            self.nstamp = st0
            self.vmq = []; self.dsq = []
            nq = [4 - half, 1 + half]
            steps = [(q, tt) for q in range(nq[0]) for tt in range(16)]
            reads = []; aslot = {}; na = 0; nb = [0, 0]; bslot = {}
            for (q, tt) in steps:
                lst = []
                for tau in ([0, 1, 2] if tt == 0 else [tt + 2]):
                    aslot[(q, tau)] = Ar[na % NA]; na += 1
                    lst.append((('A', q, tau), f"ds_read_b128 {vr(aslot[(q,tau)],4)}, v{vA} offset:{16*(64*q+tau)}"))
                for k, vb in enumerate((vBX, vBY)):
                    if q < nq[k]:
                        bslot[(k, q, tt)] = Br[k][nb[k] % NB]; nb[k] += 1
                        lst.append((('B', k, q, tt), f"ds_read_b128 {vr(bslot[(k,q,tt)],4)}, v{vb} offset:{1280*q + 16*(tt + (tt >> 2))}"))
                reads.append(lst)
            sidx = {st: n for n, st in enumerate(steps)}
            def last_use(key): return sidx[(key[1], min(key[2], 15))] if key[0] == 'A' else sidx[(key[2], key[3])]
            occ = {}
            def rd_items(n):
                out = []
                if n < len(steps):
                    for key, txt in reads[n]:
                        slot = aslot[key[1:]] if key[0] == 'A' else bslot[key[1:]]
                        if slot in occ: assert last_use(occ[slot]) < n - PD, (key, occ[slot])
                        occ[slot] = key
                        out.append((key, txt))
                return out
            bg2 = []
            if roleA:
                flagld = [f"buffer_load_dword v{pv}, v{vg}, {W}, s{sY0} offen sc1"]
                def sf():
                    self.cnt_poll_setup(L.C1B, vg, sY0, sY1, 64)
                bg1 = [su1, su2, su3, su4, su5]
                self.nstamp += 1 if self.prof else 0
                bg1 += [dload]
                if wv == 0: bg1 += [sf] + [nop] * self.o.get('fl_delay', 28) + [lambda x=x: self.vm(x, 'fl') for x in flagld]
                if wv == 0:
                    def mload():
                        p(f"v_and_b32 v{vTMP}, 7, v1"); p(f"v_mul_u32_u24 v{vms}, 12288, v{vTMP}"); p(f"v_lshrrev_b32 v{vTMP}, 3, v1")
                        p(f"v_cmp_lt_u32 vcc, 2, v{vTMP}"); p(f"v_cndmask_b32 v{vTMP2}, 0, 1, vcc"); p(f"v_mul_u32_u24 v{pv}, 3, v{vTMP2}"); p(f"v_sub_u32 v{vTMP}, v{vTMP}, v{pv}")
                        p(f"v_min_u32 v{vTMP}, 2, v{vTMP}"); p(f"v_lshl_add_u32 v{vms}, v{vTMP}, 11, v{vms}"); p(f"v_lshl_add_u32 v{vms}, v{vTMP2}, 2, v{vms}")
                        p(f"s_lshl_b32 s{t[0]}, s{sD0}, 2"); p(f"s_add_u32 s{t[0]}, s{t[0]}, {L.MODP}")
                        self.vm(f"buffer_load_dword v{msc}, v{vms}, {W}, s{t[0]} offen sc1", 'ms')
                    bg2.append(mload)
                def xb(): p(f"s_add_u32 s{sY0}, s{sD0}, {wv}"); p(f"s_lshl_b32 s{sY0}, s{sY0}, 12"); p(f"s_add_u32 s{sY0}, s{sY0}, {L.XT}")
                bg2.append(xb)
                for n in range(4):
                    bg2.append(lambda n=n: (p(f"s_mov_b32 m0, {L_XTL + wv*4096}"), self.vm(f"buffer_load_dwordx4 v{vL16}, {W}, s{sY0} offen offset:{1024*n} sc1 lds", 'epi')))
                for n in range(8):
                    bg2.append(lambda n=n: (p(f"s_mov_b32 m0, {L_WST + wv*8192 + (n>>2)*4096}"), p(f"s_mov_b32 s{sY1}, {L.ST1 + wv*8192 + (n>>2)*4096}"),
                               self.vm(f"buffer_load_dwordx4 v{vL16}, {W}, s{sY1} offen offset:{1024*(n&3)} sc1 lds", 'epi')))
            else:
                bg1 = [lambda: (p("s_waitcnt vmcnt(0)"), self.arrive(L.C1B, t[3]), self.stamp("x: C1B add")), su1, su2, su3, su4, su5, dload]
            for n in range(PD):
                for key, txt in rd_items(n): self.ds(txt, key)
            total_m = sum(2 * sum(1 for k in range(2) if q < nq[k]) for q, _ in steps)
            mid = int(total_m * self.o.get('mid', 0.6))
            cm = 0; did_mid = False
            for n, (q, tt) in enumerate(steps):
                if not did_mid and cm >= mid:
                    did_mid = True
                    self.stamp("conv mid")
                    if roleA:
                        while bg1: bg1.pop(0)()
                        if wv == 0: self.poll(flagld, [pv], sY1, f"s1b{wv}", first_issued='fl')
                    else:
                        bg2 = bg1
                    p("s_barrier")
                    self.stamp("S1b passed")
                rds = rd_items(n + PD)
                needk = [('A', q, tt), ('A', q, tt + 2)] + [('B', k, q, tt) for k in range(2) if q < nq[k]]
                self.wait(ds=needk)
                ms = [mfma(acc + 8 * k + 4 * r, vr(aslot[(q, tt + 2 * r)], 4), vr(bslot[(k, q, tt)], 4)) for k in range(2) if q < nq[k] for r in range(2)]
                for mi, m in enumerate(ms):
                    p(m); cm += 1
                    if rds: key, txt = rds.pop(0); self.ds(txt, key)
                    if mi == len(ms) - 1:
                        while rds: key, txt = rds.pop(0); self.ds(txt, key)
                    if cm % 2 == 0:
                        bg = bg2 if did_mid else bg1
                        if bg: bg.pop(0)()
            while bg2: bg2.pop(0)()
            self.stamp("conv done")
            if wv == 0:
                self.wait(vm='ms')
                for mod in ("quad_perm:[1,0,3,2]", "quad_perm:[2,3,0,1]", "row_half_mirror"):
                    p(f"v_add_f32_dpp v{msc}, v{msc}, v{msc} {mod} row_mask:0xf bank_mask:0xf")
                self.rnd(msc)
                p(f"v_add_u32 v{vTMP}, {L_MSC}, v{vL4}")
                self.ds(f"ds_write_b32 v{vTMP}, v{msc}")
            self.wait(vm=['epi', 'D'], ds='all')
            if wv < 3: p(f"s_branch {epi}")
        p.label(epi)
        self.vmq = []; self.dsq = []
        for k, vk in enumerate((vKX, vKY)):
            for r in range(2): self.ds(f"ds_read_b64 {vr(kvv+4*k+2*r,2)}, v{vk} offset:{32*(1-r)}")
        p(f"s_mul_i32 s{t[0]}, s{sCH}, 96"); p(f"s_add_u32 s{t[0]}, s{t[0]}, {L_MSC}"); p(f"v_mov_b32 v{vTMP}, s{t[0]}")
        p(f"v_lshlrev_b32 v{msc+3}, 16, v{msc+3}")
        p("s_barrier")
        self.ds(f"ds_read2_b32 {vr(msc,2)}, v{vTMP} offset0:0 offset1:8", 'm'); self.ds(f"ds_read_b32 v{msc+2}, v{vTMP} offset:64", 'm')
        for k, vs in enumerate((vXX, vXY)):
            for r in range(2): self.ds(f"ds_read_b64 {vr(rx+4*k+2*r,2)}, v{vs} offset:{32*r}", 'x')
        for k, vs in enumerate((vSX, vSY)):
            for r in range(2):
                self.ds(f"ds_read_b128 {vr(rr+8*k+4*r,4)}, v{vs} offset:{64*r}"); self.ds(f"ds_read_b128 {vr(rm+8*k+4*r,4)}, v{vs} offset:{8192+64*r}")
        sa, ca1, ga, DD = msc, msc + 1, msc + 2, msc + 3
        def bc(reg): return vr(reg & ~1, 2), reg & 1
        T = [(k, r) for k in range(2) for r in range(2)]
        X = Ar[0]; assert Ar[3] == X + 12
        KV = Ar[4]; assert Ar[7] == KV + 12
        H = Br[0][0]; assert Br[0][3] == H + 12
        O = Br[1][0]
        self.wait(ds='m')
        for n, (k, r) in enumerate(T):
            k0 = kvv + 4 * k + 2 * r
            self.unpack(KV + 4 * n + 1, KV + 4 * n, k0 + 1); self.unpack(KV + 4 * n + 3, KV + 4 * n + 2, k0)
        (c1, s1) = bc(DD)
        for o in range(0, 16, 2): p(f"v_pk_fma_f32 {vr(KV+o,2)}, {vr(KV+o,2)}, {c1}, {vr(acc+o,2)} op_sel:[0,{s1},0] op_sel_hi:[1,{s1},1]")
        p(f"v_add_f32 v{msc+1}, 1.0, v{msc+1}"); self.rnd(msc + 1)
        self.wait(ds='x')
        for n, (k, r) in enumerate(T):
            x0 = rx + 4 * k + 2 * r
            self.unpack(X + 4 * n, X + 4 * n + 1, x0); self.unpack(X + 4 * n + 2, X + 4 * n + 3, x0 + 1)
        (c1, s1) = bc(ga)
        for o in range(0, 16, 2): p(f"v_pk_mul_f32 {vr(KV+o,2)}, {vr(KV+o,2)}, {c1} op_sel:[0,{s1}] op_sel_hi:[1,{s1}]")
        self.wait(ds='all')
        for o in range(0, 16, 2): p(f"v_pk_fma_f32 {vr(H+o,2)}, {vr(X+o,2)}, {vr(rr+o,2)}, {vr(rm+o,2)}")
        (c1, s1), (c2, s2) = bc(ca1), bc(sa)
        for o in range(0, 16, 2): p(f"v_pk_fma_f32 {vr(H+o,2)}, {vr(H+o,2)}, {c1}, {c2} op_sel:[0,{s1},{s2}] op_sel_hi:[1,{s1},{s2}]")
        for o in range(0, 16, 2): p(f"v_pk_fma_f32 {vr(H+o,2)}, {vr(H+o,2)}, {vr(KV+o,2)}, {vr(X+o,2)}")
        for k in range(8): p(f"v_cvt_pk_bf16_f32 v{O+k}, v{H+2*k}, v{H+2*k+1}")
        for k in range(2):
            b = O + 4 * k
            p(f"v_permlane16_swap_b32 v{b}, v{b+2}"); p(f"v_permlane16_swap_b32 v{b+1}, v{b+3}")
            self.vm(f"buffer_store_dwordx4 {vr(b,4)}, v{vst}, {W}, s{sXO[k]} offen sc1", 'x1st')
        self.stamp("x1 stored")

    def win_items(self, which):
        p = self.p; t = sT
        s0, s1 = sU[10], sU[11]
        p(f"s_mul_i32 s{s0}, s{sJ}, 7"); p(f"s_lshl_b32 s{s1}, s{sWAVE}, 1"); p(f"s_add_u32 s{s0}, s{s0}, s{s1}")
        p(f"s_lshl_b32 s{s0}, s{s0}, 14"); p(f"s_add_u32 s{s0}, s{s0}, {L.WIN + (56*16384 if which == 0 else 0)}")
        p(f"s_add_u32 s{s1}, s{s0}, 16384"); p(f"s_cmp_eq_u32 s{sWAVE}, 3"); p(f"s_cselect_b32 s{s1}, {L.OOB}, s{s1}")
        items = []
        for ks in range(16):
            for x in range(2):
                def f(ks=ks, x=x):
                    sr_ = (s0, s1)[x]
                    if ks and ks % 4 == 0: p(f"s_add_u32 s{sr_}, s{sr_}, 4096")
                    self.vm(f"buffer_load_dwordx4 {ar(128*which+64*x+4*ks,4)}, v{vL16}, {W}, s{sr_} offen offset:{(ks%4)*1024} sc1", ('win', which, ks))
                items.append(f)
        return items

    def wsp_items(self, which):
        p = self.p; t = sT
        sb = sU[6:10]
        if which == 0:
            for x in range(4):
                p(f"s_add_u32 s{sb[x]}, s{sWAVE}, {x}"); p(f"s_and_b32 s{sb[x]}, s{sb[x]}, 3"); p(f"s_lshl_b32 s{sb[x]}, s{sb[x]}, 10")
                p(f"s_mul_i32 s{t[12]}, s{sI}, {L.WSTR}"); p(f"s_add_u32 s{sb[x]}, s{sb[x]}, s{t[12]}")
                p(f"s_lshl_b32 s{t[12]}, s{sWAVE}, 16"); p(f"s_add_u32 s{sb[x]}, s{sb[x]}, s{t[12]}"); p(f"s_add_u32 s{sb[x]}, s{sb[x]}, {L.WSP}")
        items = []
        for ks in range(8 * which, 8 * which + 8):
            for x in range(4):
                def f(ks=ks, x=x):
                    self.vm(f"buffer_load_dwordx4 {ar(16*ks+4*x,4)}, v{vL16}, {W}, s{sb[x]} offen sc1", ('wsp', ks))
                    p(f"s_add_u32 s{sb[x]}, s{sb[x]}, 4096")
                items.append(f)
        return items

    def gelu_items(self, pairs, tmp, c1v, c2s):
        p = self.p
        c1p, c1s = vr(c1v & ~1, 2), c1v & 1
        L_ = []
        for x, u in zip(pairs, tmp): L_.append(f"v_pk_mul_f32 {vr(u,2)}, {vr(x,2)}, {vr(x,2)}")
        for x, u in zip(pairs, tmp): L_.append(f"v_pk_fma_f32 {vr(u,2)}, {vr(u,2)}, s[{c2s}:{c2s+1}], {c1p} op_sel:[0,0,{c1s}] op_sel_hi:[1,0,{c1s}]")
        for x, u in zip(pairs, tmp): L_.append(f"v_pk_mul_f32 {vr(u,2)}, {vr(u,2)}, {vr(x,2)}")
        for x, u in zip(pairs, tmp): L_ += [f"v_exp_f32 v{u}, v{u}", f"v_exp_f32 v{u+1}, v{u+1}"]
        for x, u in zip(pairs, tmp): L_.append(f"v_pk_add_f32 {vr(u,2)}, {vr(u,2)}, 1.0 op_sel_hi:[1,0]")
        for x, u in zip(pairs, tmp): L_ += [f"v_rcp_f32 v{u}, v{u}", f"v_rcp_f32 v{u+1}, v{u+1}"]
        for x, u in zip(pairs, tmp): L_.append(f"v_pk_mul_f32 {vr(x,2)}, {vr(x,2)}, {vr(u,2)}")
        return L_

    def lnfin2(self, S, Q, n, r_out, m_out):
        p = self.p
        p(f"v_mul_f32 v{S}, {-1.0/n:.10g}, v{S}"); p(f"v_mul_f32 v{Q}, {1.0/n:.10g}, v{Q}")
        p(f"v_fma_f32 v{Q}, -v{S}, v{S}, v{Q}"); p(f"v_max_f32 v{Q}, 0, v{Q}"); p(f"v_add_f32 v{Q}, 1e-5, v{Q}")
        p(f"v_rsq_f32 v{r_out}, v{Q}"); p(f"v_mul_f32 v{m_out}, v{S}, v{r_out}")

    def phase2(self):
        p = self.p; t = sT
        V = Alloc(V0, PV_CS, 'v')
        vc1, vag = V(), V()
        p(f"v_mov_b32 v{vc1}, -2.302208198")
        sC2 = sU[0]; assert sC2 % 2 == 0
        p(f"s_mov_b32 s{sC2}, -0.1029432397"); p(f"s_mov_b32 s{sC2+1}, -0.1029432397")
        sW512 = sU[2]; p(f"s_lshl_b32 s{sW512}, s{sWAVE}, 9")
        win0 = self.win_items(0)
        p(f"s_and_b32 s{t[2]}, s{sWAVE}, 1"); p(f"s_lshr_b32 s{t[0]}, s{sWAVE}, 1"); p(f"s_lshl_b32 s{t[0]}, s{t[0]}, 11"); p(f"s_sub_u32 s{t[0]}, {L.MODP + 4*2048}, s{t[0]}")
        p(f"s_lshl_b32 s{t[1]}, s{t[2]}, 10"); p(f"s_add_u32 s{t[0]}, s{t[0]}, s{t[1]}")
        for part in range(8):
            self.vm(f"buffer_load_dwordx4 {vr(PV_CS+4*part,4)}, v{vL16}, {W}, s{t[0]} offen sc1", 'cs')
            if part < 7: p(f"s_add_u32 s{t[0]}, s{t[0]}, 12288")
        self.wait(vm='x1st')
        self.barrier()
        lab = p.newlabel("L_a2")
        p(f"s_cmp_eq_u32 s{sWAVE}, 0"); p(f"s_cbranch_scc0 {lab}")
        self.arrive(L.C2, t[0])
        p.label(lab)
        self.stamp("S2 arrive")
        for _ in range(self.o.get('win0_lead', 8)): win0.pop(0)()
        C = PV_CS
        p(f"v_bfe_u32 v{vTMP}, v0, 3, 4"); p(f"v_lshlrev_b32 v{vTMP}, 6, v{vTMP}")
        p(f"v_and_b32 v{vTMP2}, 3, v0"); p(f"v_lshl_add_u32 v{vTMP}, v{vTMP2}, 4, v{vTMP}")
        p(f"v_bfe_u32 v{vTMP2}, v0, 2, 1"); p(f"v_lshl_add_u32 v{vTMP}, v{vTMP2}, 3, v{vTMP}")
        p(f"v_lshrrev_b32 v{vTMP2}, 7, v0"); p(f"v_lshl_add_u32 v{vTMP}, v{vTMP2}, 10, v{vTMP}")
        p(f"v_add_u32 v{vTMP}, {L_AUG}, v{vTMP}")
        p(f"s_cmp_lt_u32 s{sWAVE}, 2"); p(f"s_cselect_b32 s{t[2]}, 1.0, 0"); p(f"s_mov_b32 s{t[3]}, s{t[2]}")
        p(f"v_lshlrev_b32 v{vTMP2}, 4, v0"); p(f"v_add_u32 v{vTMP2}, {L_CB}, v{vTMP2}")
        self.wait(vm='cs')
        for w in (16, 8, 4):
            for k in range(0, w, 2): p(f"v_pk_add_f32 {vr(C+k,2)}, {vr(C+k,2)}, {vr(C+w+k,2)}")
        p(f"v_cvt_pk_bf16_f32 v{C+4}, v{C}, v{C+1}"); p(f"v_cvt_pk_bf16_f32 v{C+5}, v{C+2}, v{C+3}")
        self.unpack(C, C + 1, C + 4); self.unpack(C + 2, C + 3, C + 5)
        assert t[2] % 2 == 0
        for o in (0, 2): p(f"v_pk_add_f32 {vr(C+o,2)}, {vr(C+o,2)}, s[{t[2]}:{t[3]}]")
        p(f"v_cvt_pk_bf16_f32 v{C+4}, v{C}, v{C+1}"); p(f"v_cvt_pk_bf16_f32 v{C+5}, v{C+2}, v{C+3}")
        self.ds(f"ds_write_b64 v{vTMP}, {vr(C+4,2)}")
        self.unpack(C, C + 1, C + 4); self.unpack(C + 2, C + 3, C + 5)
        lab = p.newlabel("L_cbw")
        p(f"s_cbranch_scc0 {lab}")
        p(f"ds_write_b128 v{vTMP2}, {vr(C,4)}")
        p.label(lab)
        for _ in range(4): win0.pop(0)()
        self.barrier()
        V.limit = PV_XRES
        au2 = V(8, 4); au1 = V(8, 4)
        acc2 = V(32, 4); acc1 = V(32, 4)
        m00 = V.mark()
        CB = V(16, 2)
        m0 = V.mark()
        AG = V(64, 4)
        p(f"v_and_b32 v{vTMP}, 1, v1"); p(f"v_lshlrev_b32 v{vag}, 10, v{vTMP}"); p(f"v_lshl_add_u32 v{vag}, v{vH}, 4, v{vag}"); p(f"v_add_u32 v{vag}, {L_AUG}, v{vag}")
        for ks in range(16): self.ds(f"ds_read_b128 {vr(AG+4*ks,4)}, v{vag} offset:{64*ks}", ('ag', ks))
        p(f"v_lshrrev_b32 v{vTMP}, 3, v0"); p(f"v_lshlrev_b32 v{vTMP}, 2, v{vTMP}"); p(f"v_add_u32 v{vTMP}, {L_CB}, v{vTMP}")
        p(f"v_add_u32 v{vTMP2}, 1024, v{vTMP}")
        for n in range(0, 16, 2): self.ds(f"ds_read2_b32 {vr(CB+n,2)}, v{vTMP if n < 8 else vTMP2} offset0:{32*(n&7)} offset1:{32*(n&7)+32}")
        for k in range(16): p(f"v_mov_b32 v{au2+k}, 0")
        for k in range(64): p(f"v_mov_b32 v{acc2+k}, 0")
        self.wait(ds='all')
        for ks in range(16):
            for _ in range(2):
                if win0: win0.pop(0)()
            self.wait(vm=('win', 0, ks))
            for x in range(2): p(mfma(au2 + 4 * x, vr(AG + 4 * ks, 4), ar(64 * x + 4 * ks, 4)))
        V.reset(m0)
        self.stamp("aug2 done")
        pv = V(2); vx, vw, vw2 = V(), V(), V()
        p(f"v_lshrrev_b32 v{vTMP}, 3, v0"); p(f"v_and_b32 v{vTMP2}, 7, v0")
        p(f"v_lshlrev_b32 v{vx}, 12, v{vTMP}"); p(f"v_lshl_add_u32 v{vx}, v{vTMP2}, 4, v{vx}")
        p(f"v_lshlrev_b32 v{vw}, 5, v{vTMP}"); p(f"v_and_b32 v{vTMP}, 1, v{vTMP2}"); p(f"v_lshl_add_u32 v{vw}, v{vTMP}, 4, v{vw}")
        p(f"v_lshrrev_b32 v{vTMP}, 1, v{vTMP2}"); p(f"v_mul_u32_u24 v{vTMP}, {XA_FR}, v{vTMP}"); p(f"v_add_u32 v{vw}, v{vw}, v{vTMP}")
        p(f"v_add_u32 v{vw2}, {L_XRES}, v{vw}")
        win1 = self.win_items(1)
        lab = p.newlabel("L_s2")
        p(f"s_cmp_eq_u32 s{sWAVE}, 0"); p(f"s_cbranch_scc0 {lab}")
        self.cnt_poll_setup(L.C2, pv + 1, t[0], t[1], 32)
        self.poll([f"buffer_load_dword v{pv}, v{pv+1}, {W}, s{t[0]} offen sc1"], [pv], t[1], "s2")
        p.label(lab)
        p(f"s_lshl_b32 s{t[0]}, s{sI}, 7"); p(f"s_add_u32 s{t[0]}, s{t[0]}, {L.X1T}")
        p("s_barrier")
        self.stamp("S2 passed")
        raw = V(64, 4)
        for n in range(16):
            self.vm(f"buffer_load_dwordx4 {vr(raw+4*n,4)}, v{vx}, {W}, s{t[0]} offen sc1", ('x1', n))
            if n < 15: p(f"s_add_u32 s{t[0]}, s{t[0]}, {32*4096}")
        S = V(8, 2); Q = V(8, 2); Xu = [V(8, 2)] * 2; Pk = [V(4, 2), V(4, 2)]
        vj = V(); assert V.n <= PV_CS
        J6 = PV_CS; sJs, sJd = sU[4], sU[5]
        self.srd(SB, P_WSP, 2048 * 4096)
        p(f"v_lshlrev_b32 v{vj}, 12, v{vN}"); p(f"v_lshl_add_u32 v{vj}, v{vH}, 4, v{vj}")
        p(f"s_lshl_b32 s{sJs}, s{sI}, 18"); p(f"s_lshr_b32 s{t[4]}, s{sJ}, 1"); p(f"s_lshl_b32 s{t[5]}, s{t[4]}, 16"); p(f"s_add_u32 s{sJs}, s{sJs}, s{t[5]}")
        p(f"s_mul_i32 s{sJd}, s{sI}, {L.WSTR}"); p(f"s_lshl_b32 s{t[5]}, s{t[4]}, 10"); p(f"s_add_u32 s{sJd}, s{sJd}, s{t[5]}")
        p(f"s_and_b32 s{t[4]}, s{sJ}, 1"); p(f"s_lshl_b32 s{t[4]}, s{t[4]}, 2"); p(f"s_add_u32 s{t[4]}, s{t[4]}, s{sWAVE}")
        p(f"s_lshl_b32 s{t[5]}, s{t[4]}, 9"); p(f"s_add_u32 s{sJs}, s{sJs}, s{t[5]}")
        p(f"s_lshl_b32 s{t[5]}, s{t[4]}, 15"); p(f"s_add_u32 s{sJd}, s{sJd}, s{t[5]}"); p(f"s_add_u32 s{sJd}, s{sJd}, {L.WSP}")
        j6l = [lambda n=n: self.vm(f"buffer_load_dwordx4 {vr(J6+4*n,4)}, v{vj}, s[{SB}:{SB+3}], s{sJs} offen offset:{64*n}", 'j6') for n in range(8)]
        def j6st(n):
            if n == 0: self.wait(vm='j6')
            self.vm(f"buffer_store_dwordx4 {vr(J6+4*n,4)}, v{vL16}, {W}, s{sJd} offen sc1", 'j6s')
            if n < 7: p(f"s_add_u32 s{sJd}, s{sJd}, 4096")
        def j6flag():
            p(f"s_lshl_b32 s{t[0]}, s{sI}, 3"); p(f"s_add_u32 s{t[0]}, s{t[0]}, s{sJ}"); p(f"s_lshl_b32 s{t[0]}, s{t[0]}, 2"); p(f"s_add_u32 s{t[0]}, s{t[0]}, s{sWAVE}")
            p(f"s_lshl_b32 s{t[0]}, s{t[0]}, 6"); p(f"s_add_u32 s{t[0]}, s{t[0]}, {L.F6}")
            self.wait(vm='j6s')
            self.lane0_store(sE, t[0]); self.vmq.append(None)
        for n in range(16):
            X = Xu[n & 1]; PK = Pk[n & 1]
            self.wait(vm=('x1', n | 1) if n % 2 == 0 else None)
            if n % 2 == 0:
                lab = p.newlabel("L_xr")
                p(f"s_cmp_eq_u32 s{sJ}, {n//2}"); p(f"s_cbranch_scc0 {lab}")
                p(f"ds_write_b128 v{vw2}, {vr(raw+4*n,4)}"); p(f"ds_write_b128 v{vw2}, {vr(raw+4*n+4,4)} offset:{4*XA_FR}")
                p.label(lab)
            for q in range(4): self.unpack(X + 2 * q, X + 2 * q + 1, raw + 4 * n + q)
            if n >= self.o.get('j6_from', 2):
                (j6l if j6l else win1).pop(0)()
            for q in range(4):
                if n == 0: p(f"v_pk_mul_f32 {vr(Q+2*q,2)}, {vr(X+2*q,2)}, {vr(X+2*q,2)}")
                else: p(f"v_pk_fma_f32 {vr(Q+2*q,2)}, {vr(X+2*q,2)}, {vr(X+2*q,2)}, {vr(Q+2*q,2)}")
            for q in range(4):
                if n == 0: p(f"v_pk_add_f32 {vr(S+2*q,2)}, {vr(X+2*q,2)}, 0 op_sel_hi:[1,0]")
                else: p(f"v_pk_add_f32 {vr(S+2*q,2)}, {vr(S+2*q,2)}, {vr(X+2*q,2)}")
            cb = CB + n; sel = cb & 1
            for q in range(4): p(f"v_pk_mul_f32 {vr(X+2*q,2)}, {vr(X+2*q,2)}, {vr(cb & ~1,2)} op_sel:[0,{sel}] op_sel_hi:[1,{sel}]")
            for q in range(4): p(f"v_cvt_pk_bf16_f32 v{PK+q}, v{X+2*q}, v{X+2*q+1}")
            self.ds(f"ds_write_b128 v{vw}, {vr(PK,4)} offset:{L_XA + n*4*XA_FR}")
        for r in list(range(S, S + 8)) + list(range(Q, Q + 8)):
            p(f"v_add_f32_dpp v{r}, v{r}, v{r} row_ror:8 row_mask:0xf bank_mask:0xf")
        for k in range(8): p(f"v_permlane16_swap_b32 v{S+k}, v{Q+k}")
        for k in range(8): p(f"v_add_f32 v{S+k}, v{S+k}, v{Q+k}")
        for k in range(4): p(f"v_permlane32_swap_b32 v{S+k}, v{S+4+k}")
        for k in range(4): p(f"v_add_f32 v{S+k}, v{S+k}, v{S+4+k}")
        p(f"v_and_b32 v{vTMP}, 1, v{vH}"); p(f"v_lshlrev_b32 v{vTMP}, 8, v{vTMP}")
        p(f"v_and_b32 v{vTMP2}, 7, v1"); p(f"v_lshl_add_u32 v{vTMP}, v{vTMP2}, 5, v{vTMP}")
        p(f"v_lshrrev_b32 v{vTMP2}, 1, v{vH}"); p(f"v_lshl_add_u32 v{vTMP}, v{vTMP2}, 4, v{vTMP}")
        p(f"s_add_u32 s{t[0]}, s{sW512}, {L_STP}"); p(f"v_add_u32 v{vTMP}, s{t[0]}, v{vTMP}")
        self.ds(f"ds_write_b128 v{vTMP}, {vr(S,4)}")
        self.barrier()
        self.stamp("staged")
        V.reset(m00)
        T8 = V(8, 2); FB = [V(16, 4), V(16, 4)]; vl8b, vst2, vrow, vzs = V(), V(), V(), V()
        cs1 = FB[0]; bi1 = FB[0] + 8
        p(f"v_add_u32 v{vl8b}, {32*XA_FR}, v{vL8}")
        def aread(ks, rt, q):
            self.ds(f"ds_read_b64_tr_b16 {vr(FB[ks&1]+4*rt+2*q,2)}, v{vL8 if ks < 8 else vl8b} offset:{L_XA + ((ks&7)*4+rt)*XA_FR + q*512}", ('a', ks, rt))
        def areads(ks): return [lambda rt=rt, q=q: aread(ks, rt, q) for rt in range(4) for q in range(2)]
        for f in areads(0): f()
        p(f"v_add_u32 v{vTMP}, {L_STP}, v{vL4}")
        for w in range(4): self.ds(f"ds_read2st64_b32 {vr(T8+2*w,2)}, v{vTMP} offset0:{2*w} offset1:{2*w+1}", 't8')
        p(f"s_add_u32 s{t[0]}, s{sW512}, {L_ST2}"); p(f"v_add_u32 v{vst2}, s{t[0]}, v{vL4}")
        p(f"v_lshlrev_b32 v{vrow}, 4, v{vH}"); p(f"v_add_u32 v{vrow}, s{t[0]}, v{vrow}")
        def ln2_fin():
            self.wait(ds='t8')
            p(f"v_pk_add_f32 {vr(T8,2)}, {vr(T8,2)}, {vr(T8+2,2)}"); p(f"v_pk_add_f32 {vr(T8+4,2)}, {vr(T8+4,2)}, {vr(T8+6,2)}")
            p(f"v_pk_add_f32 {vr(T8,2)}, {vr(T8,2)}, {vr(T8+4,2)}")
            self.lnfin2(T8, T8 + 1, 512, T8 + 2, T8 + 3)
            self.ds(f"ds_write2st64_b32 v{vst2}, v{T8+2}, v{T8+3} offset0:0 offset1:1")
            p(f"s_mul_i32 s{t[0]}, s{sWAVE}, {XA_FR}"); p(f"s_add_u32 s{t[0]}, s{t[0]}, {L_XRES}"); p(f"v_add_u32 v{vTMP2}, s{t[0]}, v{vL8}")
            for dt in range(4): self.ds(f"ds_read_b64_tr_b16 {vr(PV_XRES+2*dt,2)}, v{vTMP2} offset:{(dt>>1)*4*XA_FR + (dt&1)*512}")
        def gemm1(acc, abase, swap, bg, every, wtag, hooks={}):
            cm = 0
            for ks in range(16):
                rds = areads(ks + 1) if ks < 15 else []
                if wtag is not None: self.wait(vm=(wtag[0], wtag[1], ks))
                for rt in range(4):
                    self.wait(ds=('a', ks, rt))
                    for x in range(2):
                        a = vr(FB[ks & 1] + 4 * rt, 4); b = ar(abase + 64 * x + 4 * ks, 4)
                        if swap: a, b = b, a
                        p(mfma(acc + 16 * x + 4 * rt, a, b)); cm += 1
                        if rds: rds.pop(0)()
                        if bg and cm % every == 0: bg.pop(0)()
                if ks in hooks: hooks[ks]()
            while bg: bg.pop(0)()
        R2 = V(16, 4); M2 = V(16, 4); SS = V(16, 4); QQ = V(16, 4); TT = V(16, 2)
        def rm_reads(off):
            for rt in range(4):
                self.ds(f"ds_read_b128 {vr(R2+4*rt,4)}, v{vrow} offset:{off+64*rt}", 'rm'); self.ds(f"ds_read_b128 {vr(M2+4*rt,4)}, v{vrow} offset:{off+256+64*rt}", 'rm')
        k6 = self.o.get('j6s_at', 10)
        bgz = win1[:k6] + [lambda n=n: j6st(n) for n in range(8)] + win1[k6:]
        gemm1(acc2, 0, False, bgz, 3, None, {0: ln2_fin, 14: lambda: rm_reads(0)})
        j6flag()
        self.stamp("z2 mfma")
        vf6 = V(2)
        p(f"v_and_b32 v{vf6+1}, 31, v1"); p(f"v_lshlrev_b32 v{vf6+1}, 6, v{vf6+1}"); p(f"s_lshl_b32 s{sU[3]}, s{sI}, 11"); p(f"s_add_u32 s{sU[3]}, s{sU[3]}, {L.F6}")
        f6ld = f"buffer_load_dword v{vf6}, v{vf6+1}, {W}, s{sU[3]} offen sc1"
        for f in areads(0): f()
        self.wait(ds='rm')
        for x in range(2):
            prs = [acc2 + 16 * x + 2 * k for k in range(8)]; tmp = [TT + 2 * k for k in range(8)]
            for k in range(8): p(f"v_pk_fma_f32 {vr(tmp[k],2)}, {vr(M2+2*k,2)}, {vr(au2+4*x,2)}, {vr(au2+4*x,2)} op_sel:[0,0,1] op_sel_hi:[1,0,1]")
            for k in range(8): p(f"v_pk_fma_f32 {vr(prs[k],2)}, {vr(prs[k],2)}, {vr(R2+2*k,2)}, {vr(tmp[k],2)}")
            for x_ in self.gelu_items(prs, tmp, vc1, sC2): p(x_)
            for k in range(8):
                if x == 0: p(f"v_pk_mul_f32 {vr(QQ+2*k,2)}, {vr(prs[k],2)}, {vr(prs[k],2)}")
                else:
                    p(f"v_pk_fma_f32 {vr(QQ+2*k,2)}, {vr(prs[k],2)}, {vr(prs[k],2)}, {vr(QQ+2*k,2)}")
                    p(f"v_pk_add_f32 {vr(SS+2*k,2)}, {vr(prs[k],2)}, {vr(acc2+2*k,2)}")
        for k in range(16): p(f"v_add_f32_dpp v{SS+k}, v{SS+k}, v{SS+k} row_ror:8 row_mask:0xf bank_mask:0x3")
        for k in range(16): p(f"v_add_f32_dpp v{SS+k}, v{QQ+k}, v{QQ+k} row_ror:8 row_mask:0xf bank_mask:0xc")
        for k in range(8): p(f"v_add_f32_dpp v{SS+k}, v{SS+k}, v{SS+k} row_half_mirror row_mask:0xf bank_mask:0x5")
        for k in range(8): p(f"v_add_f32_dpp v{SS+k}, v{SS+8+k}, v{SS+8+k} row_half_mirror row_mask:0xf bank_mask:0xa")
        for mod in ("quad_perm:[1,0,3,2]", "quad_perm:[2,3,0,1]"):
            for k in range(8): p(f"v_add_f32_dpp v{SS+k}, v{SS+k}, v{SS+k} {mod} row_mask:0xf bank_mask:0xf")
        p(f"v_bfe_u32 v{vTMP}, v1, 2, 2"); p(f"v_lshlrev_b32 v{vTMP}, 7, v{vTMP}"); p(f"v_lshl_add_u32 v{vTMP}, v{vH}, 4, v{vTMP}")
        p(f"s_add_u32 s{t[0]}, s{sW512}, {L_ZP}"); p(f"v_add_u32 v{vTMP}, s{t[0]}, v{vTMP}")
        self.ds(f"ds_write_b128 v{vTMP}, {vr(SS,4)}"); self.ds(f"ds_write_b128 v{vTMP}, {vr(SS+4,4)} offset:64")
        wsp0 = self.wsp_items(0)
        self.vm(f6ld, 'f6')
        self.barrier()
        lab = p.newlabel("L_g3")
        p(f"s_cmp_eq_u32 s{sWAVE}, 0"); p(f"s_cbranch_scc0 {lab}")
        p(f"v_add_u32 v{vTMP}, {L_ZP}, v{vL4}")
        for w in range(4): p(f"ds_read2st64_b32 {vr(T8+2*w,2)}, v{vTMP} offset0:{2*w} offset1:{2*w+1}")
        p(f"s_lshl_b32 s{t[0]}, s{sI}, 3"); p(f"s_add_u32 s{t[0]}, s{t[0]}, s{sJ}"); p(f"s_lshl_b32 s{t[0]}, s{t[0]}, 10"); p(f"s_add_u32 s{t[0]}, s{t[0]}, {L.ST3}")
        p("s_waitcnt lgkmcnt(0)")
        p(f"v_pk_add_f32 {vr(T8,2)}, {vr(T8,2)}, {vr(T8+2,2)}"); p(f"v_pk_add_f32 {vr(T8+4,2)}, {vr(T8+4,2)}, {vr(T8+6,2)}")
        p(f"v_add_f32 v{T8+2}, v{T8+1}, v{T8+5}"); p(f"v_add_f32 v{T8}, v{T8}, v{T8+4}")
        p(f"v_mov_b32 v{T8+1}, s{sE}"); p(f"v_mov_b32 v{T8+3}, s{sE}")
        p(f"buffer_store_dwordx4 {vr(T8,4)}, v{vL16}, {W}, s{t[0]} offen sc1")
        p.label(lab)
        self.stamp("granule")
        self.poll([f6ld], [vf6], sE, "s6", first_issued='f6')
        AGz = SS
        def aug1(lo):
            def f():
                for ks in range(lo, lo + 8): self.ds(f"ds_read_b128 {vr(AGz+4*(ks&7),4)}, v{vag} offset:{64*ks}", ('ag', ks))
            return f
        def aug1m(lo):
            for ks in range(lo, lo + 8):
                self.wait(ds=('ag', ks))
                for x in range(2): p(mfma(au1 + 4 * x, ar(128 + 64 * x + 4 * ks, 4), vr(AGz + 4 * (ks & 7), 4)))
        gemm1(acc1, 128, True, wsp0, 4, ('win', 1), {5: aug1(0), 7: lambda: aug1m(0), 13: aug1(8), 15: lambda: aug1m(8)})
        self.stamp("z1 mfma")
        GR = SS
        p(f"s_lshl_b32 s{t[0]}, s{sI}, 13"); p(f"s_add_u32 s{t[0]}, s{t[0]}, {L.ST3}"); p(f"s_add_u32 s{t[1]}, s{t[0]}, 4096")
        p(f"v_and_b32 v{vTMP}, 1, v{vH}"); p(f"v_lshlrev_b32 v{vzs}, 9, v{vTMP}")
        p(f"v_lshrrev_b32 v{vTMP}, 1, v{vH}"); p(f"v_lshl_add_u32 v{vzs}, v{vTMP}, 8, v{vzs}"); p(f"v_lshl_add_u32 v{vzs}, v{vN}, 4, v{vzs}")
        z0, z1_, z2_, z3 = t[4:8]
        p(f"s_mul_i32 s{z0}, s{sI}, 14"); p(f"s_lshl_b32 s{z1_}, s{sWAVE}, 1"); p(f"s_add_u32 s{z0}, s{z0}, s{z1_}"); p(f"s_lshl_b32 s{z0}, s{z0}, 10")
        p(f"s_mul_i32 s{z1_}, s{sJ}, {L.ZSTR}"); p(f"s_add_u32 s{z0}, s{z0}, s{z1_}"); p(f"s_add_u32 s{z0}, s{z0}, {L.Z2N}")
        p(f"s_add_u32 s{z1_}, s{z0}, 7168"); p(f"s_add_u32 s{z2_}, s{z0}, 1024"); p(f"s_add_u32 s{z3}, s{z1_}, 1024")
        p(f"s_cmp_eq_u32 s{sWAVE}, 3"); p(f"s_cselect_b32 s{z2_}, {L.OOB}, s{z2_}"); p(f"s_cselect_b32 s{z3}, {L.OOB}, s{z3}")
        self.poll([f"buffer_load_dwordx4 {vr(GR+4*jj,4)}, v{vL16}, {W}, s{t[jj>>2]} offen offset:{(jj&3)*1024} sc1" for jj in range(8)],
                  [GR + 4 * jj + o for jj in range(8) for o in (1, 3)], sE, "s3")
        for w in (4, 2, 1):
            for jj in range(w):
                for o in (0, 2): p(f"v_add_f32 v{GR+4*jj+o}, v{GR+4*jj+o}, v{GR+4*(jj+w)+o}")
        self.lnfin2(GR, GR + 2, 896, GR + 4, GR + 5)
        p(f"v_add_u32 v{vTMP}, {L_ST3 - L_ST2}, v{vst2}")
        self.ds(f"ds_write2st64_b32 v{vTMP}, v{GR+4}, v{GR+5} offset0:0 offset1:1")
        self.wait(ds='all')
        rm_reads(L_ST3 - L_ST2)
        self.wait(ds='all')
        self.stamp("S3 done")
        for x in range(2):
            for k in range(8):
                a = acc2 + 16 * x + 2 * k
                p(f"v_pk_fma_f32 {vr(a,2)}, {vr(a,2)}, {vr(R2+2*k,2)}, {vr(M2+2*k,2)}")
            for k in range(8):
                a = acc2 + 16 * x + 2 * k
                p(f"v_cvt_pk_bf16_f32 v{TT+8*x+k}, v{a}, v{a+1}")
            for kk in range(2):
                b = TT + 8 * x + 4 * kk
                p(f"v_permlane16_swap_b32 v{b}, v{b+2}"); p(f"v_permlane16_swap_b32 v{b+1}, v{b+3}")
                self.vm(f"buffer_store_dwordx4 {vr(b,4)}, v{vzs}, {W}, s{t[4+2*x+kk]} offen sc1", 'zst')
        wsp1 = self.wsp_items(1)
        for _ in range(self.o.get('pre_f4', 6)): wsp1.pop(0)()
        RL = R2; ML = R2 + 4
        p(f"v_lshlrev_b32 v{vTMP}, 2, v{vN}"); p(f"s_add_u32 s{t[0]}, s{sW512}, {L_ST2}"); p(f"v_add_u32 v{vTMP}, s{t[0]}, v{vTMP}")
        for st in range(4):
            self.ds(f"ds_read_b32 v{RL+st}, v{vTMP} offset:{64*st}"); self.ds(f"ds_read_b32 v{ML+st}, v{vTMP} offset:{256+64*st}")
        for k in range(8):
            p(f"v_mov_b32_dpp v{cs1+k}, v{au1+k} quad_perm:[0,0,2,2] row_mask:0xf bank_mask:0xf")
            p(f"v_mov_b32_dpp v{bi1+k}, v{au1+k} quad_perm:[1,1,3,3] row_mask:0xf bank_mask:0xf")
        p(f"s_lshl_b32 s{t[0]}, s{sJ}, 5"); p(f"s_add_u32 s{t[0]}, s{t[0]}, s{sI}"); p(f"s_lshl_b32 s{t[0]}, s{t[0]}, 7"); p(f"s_add_u32 s{t[0]}, s{t[0]}, {L.F4}")
        self.wait(vm='zst')
        self.barrier()
        lab = p.newlabel("L_f4")
        p(f"s_cmp_eq_u32 s{sWAVE}, 0"); p(f"s_cbranch_scc0 {lab}")
        self.lane0_store(sE, t[0])
        p.label(lab)
        self.stamp("F4 set")
        p(f"s_lshl_b32 s{t[0]}, s{sWAVE}, 12"); p(f"s_add_u32 s{t[0]}, s{t[0]}, {L_Z1}"); p(f"v_add_u32 v{vzs}, s{t[0]}, v{vL8}")
        PK = M2
        main = []
        for x in range(2):
            prs = [acc1 + 16 * x + 2 * k for k in range(8)]; tmp = [SS + 2 * k for k in range(8)]
            for k in range(8):
                st = k >> 1; o = 2 * (k & 1); ms = (ML + st) & 1
                main.append(f"v_pk_fma_f32 {vr(tmp[k],2)}, {vr(cs1+4*x+o,2)}, {vr((ML+st)&~1,2)}, {vr(bi1+4*x+o,2)} op_sel:[0,{ms},0] op_sel_hi:[1,{ms},1]")
            for k in range(8):
                st = k >> 1; rs = (RL + st) & 1
                main.append(f"v_pk_fma_f32 {vr(prs[k],2)}, {vr(prs[k],2)}, {vr((RL+st)&~1,2)}, {vr(tmp[k],2)} op_sel:[0,{rs},0] op_sel_hi:[1,{rs},1]")
            main += self.gelu_items(prs, tmp, vc1, sC2)
            for k in range(8): main.append(f"v_cvt_pk_bf16_f32 v{PK+8*x+k}, v{prs[k]}, v{prs[k]+1}")
            for st in range(4): main.append(f"ds_write_b64 v{vzs}, {vr(PK+8*x+2*st,2)} offset:{x*2048+st*512}")
        self.mix([lambda m=m: (self.ds(m) if m.startswith('ds_') else p(m)) for m in main], wsp1, every=6)
        self.stamp("z1 epi")

    def phase3(self):
        p = self.p; t = sT
        V = Alloc(V0, PV_XRES, 'v')
        vbs = V(); pv = V(2); va = [V() for _ in range(3)]
        acc = V(112, 4); RING = 3
        ZB = [V(28, 4) for _ in range(RING)]
        GP = V(8, 2)
        self.srd(SA, P_BSP, 4096)
        p(f"v_lshlrev_b32 v{vTMP}, 1, v{vN}"); p(f"s_lshl_b32 s{t[0]}, s{sI}, 7"); p(f"s_lshl_b32 s{t[1]}, s{sWAVE}, 5"); p(f"s_add_u32 s{t[0]}, s{t[0]}, s{t[1]}")
        self.vm(f"buffer_load_ushort v{vbs}, v{vTMP}, s[{SA}:{SA+3}], s{t[0]} offen")
        p(f"s_lshl_b32 s{t[0]}, s{sJ}, 8"); p(f"s_add_u32 s{t[0]}, s{t[0]}, {L.MODP + 5*2048}")
        for part in range(8):
            self.vm(f"buffer_load_dword v{GP+part}, v{vL4}, {W}, s{t[0]} offen sc1")
            if part < 7: p(f"s_add_u32 s{t[0]}, s{t[0]}, 12288")
        for k in range(112): p(f"v_mov_b32 v{acc+k}, 0")
        for x in range(1, 4):
            p(f"s_add_u32 s{t[0]}, s{sWAVE}, {x}"); p(f"s_and_b32 s{t[0]}, s{t[0]}, 3"); p(f"s_mul_i32 s{t[0]}, s{t[0]}, {21*1024}")
            p(f"s_add_u32 s{t[0]}, s{t[0]}, {(x-1)*7*1024}"); p(f"v_add_u32 v{va[x-1]}, s{t[0]}, v{vL16}")
        p(f"v_min_u32 v{pv+1}, 7, v1"); p(f"v_lshlrev_b32 v{pv+1}, 7, v{pv+1}")
        p(f"s_lshl_b32 s{t[2]}, s{sJ}, 12"); p(f"s_lshl_b32 s{t[1]}, s{sWAVE}, 10"); p(f"s_add_u32 s{t[2]}, s{t[2]}, s{t[1]}"); p(f"s_add_u32 s{t[2]}, s{t[2]}, {L.F4}")
        zb = sU[0]
        p(f"s_mul_i32 s{zb}, s{sJ}, {L.ZSTR}"); p(f"s_mul_i32 s{t[1]}, s{sWAVE}, {16*7168}"); p(f"s_add_u32 s{zb}, s{zb}, s{t[1]}")
        p(f"s_add_u32 s{zb}, s{zb}, {L.Z2N}")
        self.poll([f"buffer_load_dword v{pv}, v{pv+1}, {W}, s{t[2]} offen sc1"], [pv], sE, "s4")
        self.stamp("S4 passed")
        def zload(ks, ft):
            p(f"s_add_u32 s{t[0]}, s{zb}, {ks*7168 + (ft>>2)*4096}")
            self.vm(f"buffer_load_dwordx4 {vr(ZB[ks%RING]+4*ft,4)}, v{vL16}, {W}, s{t[0]} offen offset:{(ft&3)*1024} sc1", ('z', ks, ft))
        TAIL = RING
        order = [(ks, ft) for ks in range(16 - TAIL) for ft in range(7)] + [(ks, ft) for ft in range(7) for ks in range(16 - TAIL, 16)]
        nl = 0
        consumed = set()
        def can_issue(k): return k < len(order) and (order[k][0] < RING or (order[k][0] - RING, order[k][1]) in consumed)
        while can_issue(nl): zload(*order[nl]); nl += 1
        for w in (4, 2, 1):
            for k in range(w): p(f"v_add_f32 v{GP+k}, v{GP+k}, v{GP+k+w}")
        self.rnd(GP)
        p(f"s_lshl_b32 s{t[1]}, s{sWAVE}, 8"); p(f"s_add_u32 s{t[1]}, s{t[1]}, {L_GB}"); p(f"v_add_u32 v{vTMP}, s{t[1]}, v{vL4}")
        self.ds(f"ds_write_b32 v{vTMP}, v{GP}")
        p(f"v_lshlrev_b32 v{vbs}, 16, v{vbs}")
        pend = []
        for (ks, ft) in order:
            self.wait(vm=('z', ks, ft))
            for x in range(4):
                p(mfma(acc + 16 * ft + 4 * x, vr(ZB[ks % RING] + 4 * ft, 4), ar(16 * ks + 4 * x, 4)))
                if pend and x in (1, 2, 3): pend.pop(0)()
            consumed.add((ks, ft))
            while can_issue(nl): zload(*order[nl]); nl += 1
            if ks == 15:
                pend += [None] * 0
                pend_new = [lambda x=x, ft=ft: self.ds(f"ds_write_b128 v{va[x-1]}, {vr(acc+16*ft+4*x,4)} offset:{ft*1024}") for x in range(1, 4)]
                pend += [lambda: None] * 3 + pend_new
        self.stamp("gemm2")
        while pend: pend.pop(0)()
        p(f"s_mul_i32 s{t[0]}, s{sWAVE}, {21*1024}"); p(f"v_add_u32 v{va[0]}, s{t[0]}, v{vL16}")
        p(f"s_lshl_b32 s{t[0]}, s{sWAVE}, 9"); p(f"s_add_u32 s{t[0]}, s{t[0]}, {L_Z1}"); p(f"v_add_u32 v{va[1]}, s{t[0]}, v{vL8}")
        Z1 = ZB[0]; ZU = ZB[1]; UP = ZB[2]
        p(f"s_mul_i32 s{t[0]}, s{sI}, {L.USTR}"); p(f"s_mul_i32 s{t[1]}, s{sWAVE}, {28*1024}"); p(f"s_add_u32 s{t[0]}, s{t[0]}, s{t[1]}"); p(f"s_add_u32 s{t[0]}, s{t[0]}, {L.U}")
        p(f"s_mov_b32 s{sU[1]}, s{t[0]}")
        p(f"s_mul_i32 s{t[1]}, s{sJ}, 3072"); p(f"s_add_u32 s{t[1]}, s{t[1]}, s{t[0]}")
        p(f"s_lshr_b32 s{t[2]}, s{sJ}, 1"); p(f"s_lshl_b32 s{t[2]}, s{t[2]}, 10"); p(f"s_add_u32 s{t[2]}, s{t[2]}, s{t[0]}"); p(f"s_add_u32 s{t[2]}, s{t[2]}, {24*1024}")
        p(f"s_and_b32 s{t[3]}, s{sJ}, 1"); p(f"s_lshl_b32 s{t[3]}, s{t[3]}, 3"); p(f"s_add_u32 s{t[2]}, s{t[2]}, s{t[3]}")
        self.barrier()
        def rreads(ft):
            for x in range(1, 4): self.ds(f"ds_read_b128 {vr(acc+16*ft+4*x,4)}, v{va[0]} offset:{((x-1)*7+ft)*1024}", ('r', ft))
            self.ds(f"ds_read_b64 {vr(Z1+2*ft,2)}, v{va[1]} offset:{ft*2048}", ('r', ft))
        rreads(0); rreads(1); rreads(2)
        bs = vbs & 1
        for ft in range(7):
            if ft + 3 < 7: rreads(ft + 3)
            self.wait(ds=('r', ft))
            a = acc + 16 * ft; zu = ZU + 4 * (ft & 1)
            for o in (0, 2): p(f"v_pk_add_f32 {vr(a+o,2)}, {vr(a+o,2)}, {vr(a+4+o,2)}")
            for o in (0, 2): p(f"v_pk_add_f32 {vr(a+8+o,2)}, {vr(a+8+o,2)}, {vr(a+12+o,2)}")
            self.unpack(zu, zu + 1, Z1 + 2 * ft); self.unpack(zu + 2, zu + 3, Z1 + 2 * ft + 1)
            for o in (0, 2): p(f"v_pk_add_f32 {vr(a+o,2)}, {vr(a+o,2)}, {vr(vbs&~1,2)} op_sel:[0,{bs}] op_sel_hi:[1,{bs}]")
            for o in (0, 2): p(f"v_pk_add_f32 {vr(a+o,2)}, {vr(a+o,2)}, {vr(a+8+o,2)}")
            for o in (0, 2): p(f"v_pk_mul_f32 {vr(a+o,2)}, {vr(a+o,2)}, {vr(zu+o,2)}")
            p(f"v_cvt_pk_bf16_f32 v{UP+2*ft}, v{a}, v{a+1}"); p(f"v_cvt_pk_bf16_f32 v{UP+2*ft+1}, v{a+2}, v{a+3}")
            if ft in (1, 3, 5): self.vm(f"buffer_store_dwordx4 {vr(UP+2*(ft-1),4)}, v{vL16}, {W}, s{t[1]} offen offset:{(ft>>1)*1024} sc1", 'ust')
            if ft == 6: self.vm(f"buffer_store_dwordx2 {vr(UP+12,2)}, v{vL16}, {W}, s{t[2]} offen sc1", 'ust')
        self.stamp("u stored")

    def phase4(self):
        p = self.p; t = sT
        V = Alloc(V0, PV_XRES, 'v')
        vd = V(); pv = V(2); vA2 = V()
        UF = V(112, 4); acc = V(16, 4); GB = V(16, 4); FB = [V(16, 4), V(16, 4), V(16, 4)]
        self.srd(SC, P_OUT, 2097152)
        p(f"s_mul_i32 s{t[3]}, s{sJ}, {112*1024}"); p(f"s_add_u32 s{t[3]}, s{t[3]}, {L.WOUT}"); p(f"s_lshl_b32 s{t[2]}, s{sWAVE}, 10"); p(f"s_add_u32 s{t[3]}, s{t[3]}, s{t[2]}")
        def dma(ks):
            p(f"s_add_u32 s{t[4]}, s{t[3]}, {ks*4096}"); p(f"s_add_u32 m0, s{t[2]}, {ks*4096}")
            self.vm(f"buffer_load_dwordx4 v{vL16}, {W}, s{t[4]} offen sc1 lds", 'dma')
        early = [ks for ks in range(28) if ks * 4096 >= 84 * 1024]
        for ks in early: dma(ks)
        p(f"s_lshl_b32 s{t[0]}, s{sI}, 3"); p(f"s_add_u32 s{t[0]}, s{t[0]}, s{sJ}"); p(f"s_lshl_b32 s{t[0]}, s{t[0]}, 7"); p(f"s_add_u32 s{t[0]}, s{t[0]}, {L.F5}")
        p(f"s_lshl_b32 s{t[1]}, s{sWAVE}, 8"); p(f"s_add_u32 s{t[1]}, s{t[1]}, {L_GB}"); p(f"v_lshlrev_b32 v{vTMP}, 4, v{vH}"); p(f"v_add_u32 v{vTMP}, s{t[1]}, v{vTMP}")
        for dt in range(4): self.ds(f"ds_read_b128 {vr(GB+4*dt,4)}, v{vTMP} offset:{64*dt}")
        self.wait(vm='ust')
        self.barrier()
        lab = p.newlabel("L_f5")
        p(f"s_cmp_eq_u32 s{sWAVE}, 0"); p(f"s_cbranch_scc0 {lab}")
        self.lane0_store(sE, t[0])
        p.label(lab)
        self.stamp("F5 set")
        for ks in range(28):
            if ks not in early: dma(ks)
        for k in range(16): p(f"v_mov_b32 v{acc+k}, 0")
        p(f"v_add_u32 v{vA2}, 65536, v{vL16}")
        p(f"v_lshlrev_b32 v{vd}, 10, v{vN}"); p(f"v_and_b32 v{vTMP}, 1, v{vH}"); p(f"v_lshl_add_u32 v{vd}, v{vTMP}, 5, v{vd}")
        p(f"v_lshrrev_b32 v{vTMP}, 1, v{vH}"); p(f"v_lshl_add_u32 v{vd}, v{vTMP}, 4, v{vd}")
        p(f"v_min_u32 v{pv+1}, 7, v1"); p(f"v_lshlrev_b32 v{pv+1}, 7, v{pv+1}")
        p(f"s_lshl_b32 s{t[0]}, s{sI}, 10"); p(f"s_add_u32 s{t[0]}, s{t[0]}, {L.F5}")
        self.poll([f"buffer_load_dword v{pv}, v{pv+1}, {W}, s{t[0]} offen sc1"], [pv], sE, "s5")
        self.stamp("S5 passed")
        def uload(ks):
            self.vm(f"buffer_load_dwordx4 {vr(UF+4*ks,4)}, v{vL16}, {W}, s{sU[1]} offen offset:{(ks&3)*1024} sc1", ('u', ks))
            if ks % 4 == 3 and ks < 27: p(f"s_add_u32 s{sU[1]}, s{sU[1]}, 4096")
        LEAD = self.o.get('ulead', 10)
        for ks in range(LEAD): uload(ks)
        p("s_barrier")
        def aread(ks, dt): self.ds(f"ds_read_b128 {vr(FB[ks%3]+4*dt,4)}, v{vL16 if ks < 16 else vA2} offset:{(ks&15)*4096 + dt*1024}", ('a', ks, dt))
        for ks in range(2):
            for dt in range(4): aread(ks, dt)
        for ks in range(28):
            self.wait(vm=('u', ks))
            for dt in range(4):
                self.wait(ds=('a', ks, dt))
                p(mfma(acc + 4 * dt, vr(FB[ks % 3] + 4 * dt, 4), vr(UF + 4 * ks, 4)))
                if ks + 2 < 28: aread(ks + 2, dt)
            if ks + LEAD < 28: uload(ks + LEAD)
        self.stamp("gemm3")
        X = FB[0]; O = FB[1]
        for dt in range(4):
            self.unpack(X + 4 * dt, X + 4 * dt + 1, PV_XRES + 2 * dt); self.unpack(X + 4 * dt + 2, X + 4 * dt + 3, PV_XRES + 2 * dt + 1)
        p(f"s_lshl_b32 s{t[0]}, s{sI}, 16"); p(f"s_lshl_b32 s{t[1]}, s{sWAVE}, 14"); p(f"s_add_u32 s{t[0]}, s{t[0]}, s{t[1]}")
        p(f"s_lshl_b32 s{t[1]}, s{sJ}, 7"); p(f"s_add_u32 s{t[0]}, s{t[0]}, s{t[1]}")
        for k in range(8): p(f"v_pk_fma_f32 {vr(X+2*k,2)}, {vr(acc+2*k,2)}, {vr(GB+2*k,2)}, {vr(X+2*k,2)}")
        for k in range(8): p(f"v_cvt_pk_bf16_f32 v{O+k}, v{X+2*k}, v{X+2*k+1}")
        for pp in range(2):
            b = O + 4 * pp
            p(f"v_permlane16_swap_b32 v{b}, v{b+2}"); p(f"v_permlane16_swap_b32 v{b+1}, v{b+3}")
            p(f"buffer_store_dwordx4 {vr(b,4)}, v{vd}, s[{SC}:{SC+3}], s{t[0]} offen offset:{64*pp}")

    def finish(self):
        p = self.p
        lab = p.newlabel("L_ep")
        p("s_cmp_eq_u32 s2, 0"); p(f"s_cbranch_scc0 {lab}")
        p(f"s_cmp_eq_u32 s{sWAVE}, 0"); p(f"s_cbranch_scc0 {lab}")
        p(f"s_mov_b32 s{sT[0]}, {L.EPOCH}")
        self.lane0_store(sE, sT[0])
        p.label(lab)
        self.stamp("end")
        self.flush_stamps()
        p.label("L_end"); p("s_endpgm")

    def build(self, listform=True):
        self.prologue(); self.phase0()
        if self.o.get('stop0'):
            self.barrier(); self.stamp("kv in LDS")
        else:
            self.phase1(); self.phase2(); self.phase3(); self.phase4()
        self.finish()
        self.p.fix_hazards()
        hdr = open("adaLN_cond__ssm_conv_h3__mixer_gmlp__prompt.s.ref").read().split("; Override")[0]
        k = f"kernel={NAME} " if listform else ""
        hdr += f"; @launch {k}grid=(256,1,1) block=(256,1,1) lds={LDS_BYTES}\n.amdgcn_target \"amdgcn-amd-amdhsa--gfx950\"\n"
        return hdr + kernel_header(NAME) + self.p.text() + kernel_desc(NAME, 256, 100, 256)

if __name__ == "__main__":
    import argparse, json
    ap = argparse.ArgumentParser(); ap.add_argument("--prof", action="store_true")
    ap.add_argument("-o", default="f.s"); ap.add_argument("--xmap", default="8x4"); ap.add_argument("--opt", default="{}")
    ap.add_argument("--plain", action="store_true")
    a = ap.parse_args()
    open(a.o, "w").write(G(a.prof, a.xmap, json.loads(a.opt)).build(not a.plain))
```
